```python
import torch

def _softmax(x, axis=-1):
    return torch.softmax(x, dim=axis)
def _gelu(x):
    return torch.nn.functional.gelu(x, approximate="tanh")
def _silu(x):
    return torch.nn.functional.silu(x)
def _sigmoid(x):
    return torch.sigmoid(x)
def _layernorm(x, axis=-1, eps=1e-5):
    m = x.mean(dim=axis, keepdim=True)
    v = x.var(dim=axis, keepdim=True, unbiased=False)
    return (x - m) / torch.sqrt(v + eps)
def _scatter_add(tgt, idx, src, axis=0):
    return tgt.clone().index_add_(axis, idx, src)
def _segment_sum(src, seg, n):
    out = torch.zeros((n,) + src.shape[1:], dtype=src.dtype)
    return out.index_add_(0, seg, src)
def _pad(x, pw):
    flat = tuple(v for pair in reversed(pw) for v in pair)
    return torch.nn.functional.pad(x, flat)

kernel_name = 'parallel_sum__spectral_gfnet__glu_gated_swiglu__prompt'

def setup_inputs():

    _w = (lambda a: (lambda t: t.to(torch.bfloat16) if t.is_floating_point() else t)(torch.as_tensor(a)))
    def _A_setup():
        B, S, D = 1, 2048, 640
        Df = D // 2 + 1
        return {
            "x": _w((lambda *s: torch.randn(*s, dtype=torch.bfloat16) * 0.05)(B, S, D)),
            "w_r": _w((lambda *s: torch.randn(*s, dtype=torch.bfloat16) * 0.4)(S, Df) * 0.02),
            "w_i": _w((lambda *s: torch.randn(*s, dtype=torch.bfloat16) * 0.4)(S, Df) * 0.02),
        }
    _A_in = _A_setup()

    def _B_setup():
        B, S, D, F = 1, 2048, 640, 1536
        return {
            "x": _w((lambda *s: torch.randn(*s, dtype=torch.bfloat16) * 0.05)(B, S, D)),
            "w1": _w((lambda *s: torch.randn(*s, dtype=torch.bfloat16) * 0.2)(D, F) * (2.0 / D) ** 0.5),
            "w3": _w((lambda *s: torch.randn(*s, dtype=torch.bfloat16) * 0.2)(D, F) * (2.0 / D) ** 0.5),
            "w2": _w((lambda *s: torch.randn(*s, dtype=torch.bfloat16) * 0.2)(F, D) * (2.0 / F) ** 0.5),
        }
    _B_in = _B_setup()

    return {
        "A_x": _A_in["x"],
        "A_w_r": _A_in["w_r"],
        "A_w_i": _A_in["w_i"],
        "B_x": _B_in["x"],
        "B_w1": _B_in["w1"],
        "B_w3": _B_in["w3"],
        "B_w2": _B_in["w2"],
    }

def reference(A_x, A_w_r, A_w_i, B_x, B_w1, B_w3, B_w2):
    def _A_ref(x, w_r, w_i):
        B, S, D = x.shape
        X = (lambda x, axes=(-2,-1): torch.fft.rfft2(x.float(), dim=axes))(x, axes=(-2, -1))
        W = w_r + 1j * w_i
        X = X * W
        y = (lambda x, s, axes=(-2,-1): torch.fft.irfft2(x, s=s, dim=axes).to(torch.bfloat16))(X, (S, D), axes=(-2, -1))
        return y

    def _B_ref(x, w1, w3, w2):
        gate = torch.einsum("bsd,df->bsf", x, w1)
        up = torch.einsum("bsd,df->bsf", x, w3)
        h = _silu(gate) * up
        out = torch.einsum("bsf,fd->bsd", h, w2)
        return out

    x = A_x
    xn = _layernorm(x, axis=-1)
    return x + _A_ref(xn, A_w_r, A_w_i) + _B_ref(xn, B_w1, B_w3, B_w2)
```

```python
import re

REG_RE = re.compile(r'^(-|abs\()?([vas])(?:(\d+)|\[(\d+):(\d+)\])\)?$')

def regs_of(op):
    op = op.strip()
    m = REG_RE.match(op)
    if m:
        k = m.group(2)
        if m.group(3) is not None:
            return [(k, int(m.group(3)))]
        return [(k, i) for i in range(int(m.group(4)), int(m.group(5)) + 1)]
    if op in ('vcc', 'exec'):
        return [(op, 0)]
    if op in ('vcc_lo', 'vcc_hi'): return [('vcc', 0)]
    if op in ('exec_lo', 'exec_hi'): return [('exec', 0)]
    if op == 'm0': return [('m0', 0)]
    return []

TRANS = ('v_exp_f32', 'v_log_f32', 'v_rcp_f32', 'v_rsq_f32', 'v_sqrt_f32', 'v_sin_f32', 'v_cos_f32', 'v_rcp_iflag_f32')

class I:
    __slots__ = ('text', 'mn', 'kind', 'rd', 'wr', 'tok', 'meta', 'passes', 'srcC', 'srcAB', 'dpp', 'wide_store')
    def __init__(self, text, tok=None, meta=None):
        self.text = text; self.tok = tok; self.meta = meta
        self.rd = []; self.wr = []; self.kind = 'other'; self.passes = 0; self.srcC = []; self.srcAB = []
        self.dpp = False; self.wide_store = []
        t = text.split(';')[0].strip()
        if t.endswith(':'):
            self.mn = 'label'; self.kind = 'label'; return
        if t.startswith('.') or t == '':
            self.mn = 'dir'; self.kind = 'dir'; return
        parts = t.split(None, 1)
        mn = parts[0]; self.mn = mn
        rest = parts[1] if len(parts) > 1 else ''
        ops = []; cur = ''; depth = 0
        for ch in rest:
            if ch in '[(': depth += 1
            if ch in '])': depth -= 1
            if ch == ',' and depth == 0: ops.append(cur.strip()); cur = ''
            else: cur += ch
        if cur.strip(): ops.append(cur.strip())
        mods = ''
        if ops:
            sp = ops[-1].split(None, 1)
            ops[-1] = sp[0]; mods = sp[1] if len(sp) > 1 else ''
        R = [regs_of(o) for o in ops]
        if mn.startswith('v_mfma'):
            self.kind = 'mfma'
            self.passes = 8 if '32x32x16' in mn else 4 if '16x16x32' in mn else None
            assert self.passes, mn
            self.wr = R[0]; self.srcAB = R[1] + R[2]; self.srcC = R[3]; self.rd = self.srcAB + self.srcC
        elif mn.startswith('v_'):
            self.kind = 'valu'
            base = re.sub(r'_(e32|e64|dpp|sdwa)$', '', mn)
            self.dpp = mn.endswith('_dpp') or 'quad_perm' in mods or 'row_' in mods
            if base.startswith('v_permlane') and 'swap' in base:
                self.wr = R[0] + R[1]; self.rd = R[0] + R[1]
            elif base in ('v_add_co_u32', 'v_sub_co_u32', 'v_subrev_co_u32', 'v_addc_co_u32', 'v_subb_co_u32'):
                self.wr = R[0] + R[1]; self.rd = sum(R[2:], [])
            else:
                self.wr = R[0]; self.rd = sum(R[1:], [])
                if base in ('v_fmac_f32', 'v_writelane_b32', 'v_dot2c_f32_bf16', 'v_pk_fmac_f16') or self.dpp or ('sdwa' in mn and 'PRESERVE' in mods):
                    self.rd = self.rd + R[0]
            if base in TRANS: self.kind = 'trans'
        elif mn.startswith('ds_'):
            self.kind = 'ds'
            if mn.startswith('ds_read') or mn.startswith('ds_bpermute') or mn.startswith('ds_swizzle'):
                self.wr = R[0]; self.rd = sum(R[1:], [])
                pass
            else:
                self.rd = sum(R, [])
        elif mn.startswith('buffer_') or mn.startswith('global_'):
            self.kind = 'vmem'
            islds = bool(re.search(r'\blds\b', mods)) or 'load_lds' in mn
            if mn in ('buffer_inv', 'buffer_wbl2'):
                pass
            elif 'load' in mn and not islds:
                self.wr = R[0]; self.rd = sum(R[1:], [])
                pass
            else:
                self.rd = sum(R, [])
                if islds: self.rd = self.rd + [('m0', 0)]; self.meta = self.meta or 'ldsdma'
                if 'store' in mn and ('x3' in mn or 'x4' in mn):
                    self.wide_store = R[0] if mn.startswith('buffer_') else R[1]
        elif mn.startswith('s_load') or mn in ('s_memtime', 's_memrealtime'):
            self.kind = 'smem'; self.wr = R[0]; self.rd = sum(R[1:], [])
        elif mn in ('s_waitcnt', 's_nop', 's_barrier', 's_sleep', 's_endpgm', 's_setprio'):
            self.kind = mn
        elif mn.startswith('s_cbranch') or mn == 's_branch':
            self.kind = 'branch'
            if 'vcc' in mn: self.rd = [('vcc', 0)]
        elif mn.startswith('s_cmp') or mn.startswith('s_bitcmp'):
            self.kind = 'salu'; self.rd = sum(R, [])
        elif mn.startswith('s_'):
            self.kind = 'salu'; self.wr = R[0]; self.rd = sum(R[1:], [])
            if 'saveexec' in mn: self.wr = self.wr + [('exec', 0)]; self.rd = self.rd + [('exec', 0)]
        else:
            raise ValueError(text)
        if self.kind in ('valu', 'trans') and mn.startswith('v_cndmask') and len(ops) == 3:
            self.rd = self.rd + [('vcc', 0)]

class Wait:
    def __init__(self, toks=(), vm_all=False, ds_all=False):
        self.toks = list(toks); self.vm_all = vm_all; self.ds_all = ds_all
        self.kind = 'wait'

class Tok:
    def __init__(self, name=''): self.name = name

class Prog:
    def __init__(self): self.L = []
    def __call__(self, text, tok=None):
        for line in text.split('\n'):
            line = line.strip()
            if line: self.L.append(I(line, tok=tok))
        return tok
    def t(self, text):
        tok = Tok(text); self.L.append(I(text, tok=tok)); return tok
    def wait(self, *toks):
        fl = []
        for t in toks:
            if t is None: continue
            if isinstance(t, (list, tuple)): fl += [x for x in t if x is not None]
            else: fl.append(t)
        self.L.append(Wait(fl))
    def wait_vm(self): self.L.append(Wait(vm_all=True))
    def wait_ds(self): self.L.append(Wait(ds_all=True))
    def barrier(self):
        self.wait_ds(); self('s_barrier')
    def ext(self, other): self.L += other.L if isinstance(other, Prog) else other

def merge(main, fill, slots):
    out = []; fi = 0; n = 0; F = fill.L
    def take(cnt):
        nonlocal fi
        while fi < len(F) and cnt > 0:
            x = F[fi]; out.append(x); fi += 1
            if isinstance(x, Wait): continue
            if x.kind == 'salu' and ('m0', 0) in x.wr: continue
            cnt -= 1
    for x in main.L:
        out.append(x)
        if not isinstance(x, Wait) and x.kind == 'mfma':
            take(slots(n)); n += 1
    take(1 << 30)
    p = Prog(); p.L = out; return p

def finalize(L, report=None):
    out = []
    vm = []; ds = []
    smem_pending = set()
    nops = 0; nwaits = 0
    def emit(i):
        out.append(i)
    def do_wait(nvm, nds):
        nonlocal vm, ds, nwaits
        parts = []
        if nvm is not None and nvm < len(vm):
            n = min(nvm, 63); parts.append(f'vmcnt({n})'); vm = vm[len(vm) - n:] if n else []
        if nds is not None and nds < len(ds):
            n = min(nds, 15); parts.append(f'lgkmcnt({n})'); ds = ds[len(ds) - n:] if n else []
        if parts:
            emit(I('s_waitcnt ' + ' '.join(parts))); nwaits += 1
    def need(q, pred):
        for idx in range(len(q) - 1, -1, -1):
            if pred(q[idx]): return len(q) - 1 - idx
        return None
    for x in L:
        if isinstance(x, Wait):
            ts = set(id(t) for t in x.toks)
            nvm = 0 if x.vm_all else need(vm, lambda e: id(e[0]) in ts)
            nds = 0 if x.ds_all else need(ds, lambda e: id(e[0]) in ts)
            do_wait(nvm, nds); continue
        if x.kind in ('label', 'branch'):
            if x.kind == 'label' or True:
                pend = [e for e in vm + ds if e[1]]
                assert not pend or (x.meta == 'ok'), f"pending register loads across control flow at {x.text}: {[(e[0].name if e[0] else None) for e in pend]}"
        if x.kind == 'dir':
            emit(x); continue
        if x.kind == 's_waitcnt':
            m = re.search(r'vmcnt\((\d+)\)', x.text)
            if m:
                n = int(m.group(1)); vm = vm[len(vm) - n:] if n and n < len(vm) else ([] if n == 0 else vm)
            m = re.search(r'lgkmcnt\((\d+)\)', x.text)
            if m:
                n = int(m.group(1)); ds = ds[len(ds) - n:] if n and n < len(ds) else ([] if n == 0 else ds)
                if n == 0: smem_pending = set()
            emit(x); continue
        touched = set(x.rd) | set(x.wr)
        assert not (touched & smem_pending), f"smem result not waited: {x.text}"
        tds = set(x.rd) if x.kind == 'ds' else touched
        nvm = need(vm, lambda e: e[1] & touched); nds = need(ds, lambda e: e[1] & tds)
        do_wait(nvm, nds)
        req = 0
        if x.kind not in ('label',):
            dist = 0
            rd = set(x.rd); wr = set(x.wr)
            isvalu = x.kind in ('valu', 'trans')
            for y in reversed(out):
                if dist >= 20: break
                if y.kind == 'dir': continue
                if y.kind == 'label':
                    continue
                w = 0; ywr = set(y.wr)
                yv = y.kind in ('valu', 'trans')
                if yv:
                    vw = {r for r in ywr if r[0] in 'va'}
                    sw = {r for r in ywr if r[0] == 's' or r[0] == 'vcc'}
                    if x.kind == 'mfma' and vw & rd: w = max(w, 2)
                    if isvalu and vw & rd:
                        if x.dpp or 'permlane' in x.mn: w = max(w, 2)
                        if 'readfirstlane' in x.mn or 'readlane' in x.mn: w = max(w, 1)
                        if y.kind == 'trans' and x.kind != 'trans': w = max(w, 1)
                        if 'sdwa' in y.mn or 'op_sel' in y.text: w = max(w, 1)
                    if sw & rd:
                        if isvalu: w = max(w, 4 if ('readlane' in x.mn or 'writelane' in x.mn) else 2)
                        if x.kind == 'vmem': w = max(w, 5)
                        if x.kind in ('salu', 'branch'): w = max(w, 1)
                if y.kind == 'mfma':
                    big = 12 if y.passes == 8 else 8
                    if x.kind == 'mfma':
                        if ywr & set(x.srcAB): w = max(w, big)
                        if ywr & set(x.srcC):
                            if not (y.wr == x.srcC and y.passes == x.passes): w = max(w, big - 2)
                        elif ywr & wr: w = max(w, big)
                    elif x.kind in ('valu', 'trans', 'vmem', 'ds'):
                        if ywr & (rd | wr): w = max(w, big)
                        if isvalu and set(y.srcC) & wr: w = max(w, 7 if y.passes == 8 else 3)
                if y.kind == 'salu' and ('m0', 0) in ywr and x.meta == 'ldsdma': w = max(w, 1)
                if y.wide_store and set(y.wide_store) & wr: w = max(w, 2)
                if w > dist: req = max(req, w - dist)
                if y.kind == 's_nop': dist += int(y.text.split()[1]) + 1
                else: dist += 1
        while req > 0:
            n = min(req, 16); emit(I(f's_nop {n-1}')); nops += n; req -= n
        emit(x)
        if x.kind == 'vmem': vm.append((x.tok, set(x.wr)))
        elif x.kind == 'ds': ds.append((x.tok, set(x.wr)))
        elif x.kind == 'smem': smem_pending |= set(x.wr)
    if report is not None: report.update(nops=nops, waits=nwaits, n=len(out))
    return [i.text for i in out]

class Regs:
    def __init__(self, n, first=0):
        self.free_ = set(range(first, n)); self.names = {}; self.hi = 0
    def get(self, n=1, align=1, name=None):
        if n >= 2 and align == 1: align = 2
        for b in range(0, 512):
            if b % align == 0 and all((b + i) in self.free_ for i in range(n)):
                for i in range(n): self.free_.discard(b + i)
                self.hi = max(self.hi, b + n)
                return b
        raise RuntimeError(f"out of registers ({n}) free={len(self.free_)}")
    def put(self, b, n=1):
        for i in range(n):
            assert (b + i) not in self.free_
            self.free_.add(b + i)
def vr(b, n=1, k='v'): return f'{k}{b}' if n == 1 else f'{k}[{b}:{b+n-1}]'
def ar(b, n=1): return vr(b, n, 'a')
```

```python
import numpy as np
S, D, F = 2048, 640, 1536
def bf(x):
    x = np.ascontiguousarray(x, dtype=np.float32)
    u = x.view(np.uint32)
    r = ((u + 0x7FFF + ((u >> 16) & 1)) >> 16) << 16
    return r.astype(np.uint32).view(np.float32)
def bfc(z): return bf(z.real) + 1j * bf(z.imag)
def bits(x): return (bf(x).view(np.uint32) >> 16).astype(np.uint16)
def unbits(u): return (u.astype(np.uint32) << 16).view(np.float32)

def make_inputs(seed=0):
    r = np.random.default_rng(seed)
    x = bf(bf(r.standard_normal((S, D))) * 0.05)
    wr = bf(bf(bf(r.standard_normal((S, 321))) * 0.4) * 0.02); wi = bf(bf(bf(r.standard_normal((S, 321))) * 0.4) * 0.02)
    w1 = bf(bf(bf(r.standard_normal((D, F))) * 0.2) * (2.0 / D) ** 0.5); w3 = bf(bf(bf(r.standard_normal((D, F))) * 0.2) * (2.0 / D) ** 0.5)
    w2 = bf(bf(bf(r.standard_normal((F, D))) * 0.2) * (2.0 / F) ** 0.5)
    return x, wr, wi, w1, w3, w2

def exact(x, wr, wi, w1, w3, w2):
    x = x.astype(np.float64)
    m = x.mean(1, keepdims=True); v = x.var(1, keepdims=True)
    xn = (x - m) / np.sqrt(v + 1e-5)
    y = np.fft.irfft2(np.fft.rfft2(xn) * (wr + 1j * wi), s=(S, D))
    g = xn @ w1; u = xn @ w3
    h = g / (1 + np.exp(-g)) * u
    return x + y + h @ w2, y, h

def model(x, wr, wi, w1, w3, w2):
    out = {}
    m = x.mean(1, dtype=np.float64).astype(np.float32); c = x - m[:, None]
    var = (c.astype(np.float64) ** 2).mean(1).astype(np.float32) + np.float32(1e-5)
    rs = 1 / np.sqrt(var)
    xn = bf(c * rs[:, None])
    out['m'] = m; out['var'] = var
    z = xn[:1024] + 1j * xn[1024:]
    d1 = np.arange(32); k1 = np.arange(32); d2 = np.arange(20); k2 = np.arange(20)
    F32 = bfc(np.exp(-2j * np.pi * np.outer(d1, k1) / 32))
    F20 = bfc(np.exp(-2j * np.pi * np.outer(d2, k2) / 20))
    tw = np.exp(-2j * np.pi * np.outer(d2, k1) / 640).astype(np.complex64)
    T = np.einsum('pab,ak->pbk', z.reshape(1024, 32, 20), F32)
    T = bfc(T * tw)
    Z = np.einsum('pbk,bq->pqk', T, F20).reshape(1024, 640)
    Z = bfc(Z); out['Z'] = Z
    k = np.arange(321); f1 = np.arange(8); sig = (-1.0) ** f1
    Zp = Z.reshape(4, 256, 640)
    s2 = np.arange(256); p = np.arange(4)
    th = -2 * np.pi * f1[:, None, None] * (256 * p[None, :, None] + s2[None, None, :]) / 2048
    al = bfc(np.exp(1j * (th - sig[:, None, None] * np.pi / 4)) / np.sqrt(2)); be = bfc(np.exp(1j * (th + sig[:, None, None] * np.pi / 4)) / np.sqrt(2))
    V = np.einsum('fps,psk->fsk', al, Zp[:, :, k]) + np.einsum('fps,psk->fsk', be, np.conj(Zp[:, :, (640 - k) % 640]))
    V = bfc(V); out['V'] = V
    i16 = np.arange(16)
    F16 = bfc(np.exp(-2j * np.pi * np.outer(i16, i16) / 16)); tw2 = np.exp(-2j * np.pi * np.outer(i16, i16) / 256).astype(np.complex64)
    A = np.einsum('fabk,ac->fbck', V.reshape(8, 16, 16, 321), F16)
    A = bfc(A * tw2[None, :, :, None])
    X = np.einsum('fbck,be->feck', A, F16)
    W = (wr + 1j * wi).reshape(16, 16, 8, 321).transpose(2, 0, 1, 3)
    X = bfc(X * W)
    A = np.einsum('feck,eb->fcbk', X, np.conj(F16))
    A = bfc(A * np.conj(tw2)[None, :, :, None])
    Vp = np.einsum('fcbk,ca->fabk', A, np.conj(F16)).reshape(8, 256, 321)
    Vp = bfc(Vp); out['Vp'] = Vp
    K = np.sqrt(2) / (2048 * 640)
    ga = bfc(K * np.exp(1j * (-th + sig[:, None, None] * np.pi / 4))); de = bfc(K * np.exp(1j * (th + sig[:, None, None] * np.pi / 4)))
    P1 = np.einsum('fps,fsk->psk', ga, Vp); P2 = np.einsum('fps,fsk->psk', de, np.conj(Vp))
    P = np.zeros((4, 256, 640), np.complex64)
    P[:, :, (640 - k[1:320])] = P2[:, :, 1:320]; P[:, :, k] = P1
    P[:, :, 0] = (P1[:, :, 0] + P2[:, :, 0]) / 2; P[:, :, 320] = (P1[:, :, 320] + P2[:, :, 320]) / 2
    P = bfc(P).reshape(1024, 20, 32); out['P'] = P.reshape(1024, 640)
    T = np.einsum('pqk,qb->pkb', P, np.conj(F20))
    T = bfc(T * np.conj(tw).T[None])
    Y = np.einsum('pkb,ka->pab', T, np.conj(F32)).reshape(1024, 640)
    y = bf(np.concatenate([Y.real, Y.imag], 0)); out['y'] = y
    yp = bf(x + y); out['yp'] = yp
    cs1 = w1.sum(0, dtype=np.float64).astype(np.float32); cs3 = w3.sum(0, dtype=np.float64).astype(np.float32)
    g = x @ w1 - m[:, None] * cs1; u = x @ w3 - m[:, None] * cs3
    h = bf(g * u / ((1 + np.exp(-g * rs[:, None])) * var[:, None])); out['h'] = h
    out['out'] = bf(yp + h @ w2)
    return out
if __name__ == "__main__":
    inp = make_inputs(0)
    e, y, h = exact(*inp)
    o = model(*inp)
    print("y err max", np.abs(o['y'] - y).max(), "rms", np.sqrt(((o['y'] - y) ** 2).mean()), "y rms", np.sqrt((y ** 2).mean()))
    print("h err max", np.abs(o['h'] - h).max(), "h rms", np.sqrt((h**2).mean()))
    print("out err max", np.abs(o['out'] - e).max(), "rms", np.sqrt(((o['out'] - e) ** 2).mean()), "max|out|", np.abs(e).max())
```

```python
import numpy as np
from model import bits
L = np.arange(64)
def frag_bf(fn):
    a = np.zeros((64, 8), np.float64)
    for l in range(64):
        for e in range(8): a[l, e] = fn(l, e)
    return bits(a.astype(np.float32)).reshape(-1).view(np.uint32)
def frag_f32(fn):
    a = np.zeros((64, 4), np.float32)
    for l in range(64):
        for i in range(4): a[l, i] = fn(l, i)
    return a.reshape(-1).view(np.uint32)
c, s, pi = np.cos, np.sin, np.pi
def build():
    T = []; names = {}
    def add(n, a): names[n] = len(T); T.append(a)
    perm = lambda t, l, e: 16 * t + 8 * (e >> 2) + 4 * (l >> 5) + (e & 3)
    for t in range(2): add(f'C32_{t}', frag_bf(lambda l, e: c(2 * pi * (l & 31) * perm(t, l, e) / 32)))
    for t in range(2): add(f'S32_{t}', frag_bf(lambda l, e: s(2 * pi * (l & 31) * perm(t, l, e) / 32)))
    for t in range(2): add(f'N32_{t}', frag_bf(lambda l, e: -s(2 * pi * (l & 31) * perm(t, l, e) / 32)))
    for j in range(4): add(f'TWC_{j}', frag_f32(lambda l, i: c(2 * pi * (l & 31) * (8 * j + 4 * (l >> 5) + i) / 640)))
    for j in range(4): add(f'TWS_{j}', frag_f32(lambda l, i: s(2 * pi * (l & 31) * (8 * j + 4 * (l >> 5) + i) / 640)))
    def f20(fn, idx, d): return fn(2 * pi * idx * d / 20) if (idx < 20 and d < 20) else 0.0
    ns = lambda x: -s(x)
    add('C20', frag_bf(lambda l, e: f20(c, l & 31, perm(0, l, e))))
    add('S20', frag_bf(lambda l, e: f20(s, l & 31, perm(0, l, e))))
    add('N20', frag_bf(lambda l, e: f20(ns, l & 31, perm(0, l, e))))
    add('MRE', frag_bf(lambda l, e: f20(c if e < 4 else s, l & 31, 16 + 4 * (l >> 5) + (e & 3))))
    add('MIM', frag_bf(lambda l, e: f20(ns if e < 4 else c, l & 31, 16 + 4 * (l >> 5) + (e & 3))))
    n1 = len(T)
    for t in range(3): add(f'G20R_{t}', frag_bf(lambda l, e: f20(c if (e & 1) == 0 else ns, l & 31, 8 * t + 4 * (l >> 5) + (e >> 1))))
    for t in range(3): add(f'G20I_{t}', frag_bf(lambda l, e: f20(s if (e & 1) == 0 else c, l & 31, 8 * t + 4 * (l >> 5) + (e >> 1))))
    a16 = lambda l, e: 2 * pi * (l & 15) * (4 * (l >> 4) + (e >> 1)) / 16
    add('FRE', frag_bf(lambda l, e: c(a16(l, e)) if (e & 1) == 0 else s(a16(l, e))))
    add('FIM', frag_bf(lambda l, e: -s(a16(l, e)) if (e & 1) == 0 else c(a16(l, e))))
    add('IRE', frag_bf(lambda l, e: c(a16(l, e)) if (e & 1) == 0 else -s(a16(l, e))))
    add('IIM', frag_bf(lambda l, e: s(a16(l, e)) if (e & 1) == 0 else c(a16(l, e))))
    add('TW2C', frag_f32(lambda l, i: c(2 * pi * (l & 15) * (4 * (l >> 4) + i) / 256)))
    add('TW2S', frag_f32(lambda l, i: s(2 * pi * (l & 15) * (4 * (l >> 4) + i) / 256)))
    return np.concatenate(T), names, n1
if __name__ == '__main__':
    T, names, n1 = build(); print(len(T) * 4, names, n1)
```

```python
import sys, math
import numpy as np
from asmlib import *
import tables

KNAME = "parallel_sum__spectral_gfnet__glu_gated_swiglu__prompt_kernel"
WS_GEN = 0; WS_STATS = 0x1000; WS_W2F = 0x10000; WS_HF = 0x11000; WS_YF = 0x16000
MB = 1 << 20
WS_V = 1 * MB; WS_WP = 5 * MB; WS_VP = 9 * MB; WS_H = 13 * MB; WS_Y = 20 * MB; WS_W2P = 23 * MB; WS_STAMP = 128 * MB
WS_SIZE = 268435456
L_T23 = 0; L_C1 = 12288; L_C2 = 32768; L_C3 = 43008; L_C4 = 55296; L_XS = 65536; L_RING = 114688
L_CS = L_C4
LDS_BYTES = 163840
sX, sWR, sWI, sW1, sW3, sW2, sOUT, sWS, sTAB = ('s[%d:%d]' % (4 * i, 4 * i + 3) for i in range(1, 10))
sW, sXCD, sJ, sR, sC, sS2, sR2, sC2, sN = ('s%d' % i for i in range(40, 49))
sOFFA, sOFFB, sXB, sW1B, sREC, sXROW = ('s%d' % i for i in range(49, 55))
T0, T1, T2, T3, T4, T5 = ('s%d' % i for i in range(56, 62))
sSAVE = 's[62:63]'; sPOLL = 's64'
LOG2E = 1.4426950408889634
def f2u(x): return int(np.float32(x).view(np.uint32))
def hx(x): return hex(x & 0xffffffff)

class Gen:
    def __init__(self, stamps=False, opts=None):
        self.V = Regs(256, first=1)
        self.stamps = stamps; self.opts = opts or {}
        self.TAB, self.tn, self.n1 = tables.build()
        self.slow = []; self.nlab = 0; self.nstamp = 0
    def lab(self, s):
        self.nlab += 1; return f'L_{s}_{self.nlab}'
    def stamp(self, p, name=''):
        if not self.stamps: return
        i = self.nstamp; self.nstamp += 1
        self.stamp_names = getattr(self, 'stamp_names', []) + [name]
        a, b = self.vST, self.vST + 1
        p(f's_memrealtime s[66:67]\ns_memtime s[68:69]\ns_waitcnt lgkmcnt(0)')
        p(f'v_mov_b32 v{a}, s66\nv_mov_b32 v{b}, s68\ns_mov_b64 {sSAVE}, exec\ns_mov_b64 exec, 1')
        p(f'buffer_store_dwordx2 v[{a}:{b}], v{self.vZERO}, {sWS}, s70 offen offset:{8*i}\ns_mov_b64 exec, {sSAVE}')
    def poll(self, p, load, check, name):
        l0 = self.lab(name); l1 = self.lab(name + 'd')
        p.wait_vm(); p.wait_ds()
        p(f's_mov_b32 {sPOLL}, 0\n{l0}:')
        load(p); p.wait_vm(); check(p)
        p(f's_cbranch_vccz {l1}\ns_sleep 2\ns_add_u32 {sPOLL}, {sPOLL}, 1\ns_cmp_lt_u32 {sPOLL}, 0x40000\ns_cbranch_scc1 {l0}\n{l1}:')

    def prologue(self):
        p = Prog(); V = self.V
        p('s_cmp_ge_u32 s2, 256\ns_cbranch_scc1 L_end')
        p('s_load_dwordx4 s[72:75], s[0:1], 0\ns_load_dwordx2 s[76:77], s[0:1], 16\ns_load_dwordx4 s[80:83], s[0:1], 32')
        p('s_load_dwordx4 s[84:87], s[0:1], 48\ns_load_dwordx2 s[88:89], s[0:1], 72')
        self.vL = V.get(); self.vZERO = V.get()
        vL = self.vL
        p(f'v_and_b32 v{vL}, 63, v0\nv_lshrrev_b32 v{self.vZERO}, 6, v0')
        p(f'v_readfirstlane_b32 {sW}, v{self.vZERO}\nv_mov_b32 v{self.vZERO}, 0')
        p(f's_and_b32 {sXCD}, s2, 7\ns_lshr_b32 {sJ}, s2, 3')
        p(f's_and_b32 {T0}, {sXCD}, 1\ns_lshr_b32 {T1}, {sXCD}, 1\ns_and_b32 {T2}, {sJ}, 7\ns_lshr_b32 {T3}, {sJ}, 3')
        p(f's_lshl_b32 {sR}, {T0}, 3\ns_add_u32 {sR}, {sR}, {T2}\ns_lshl_b32 {sC}, {T1}, 2\ns_add_u32 {sC}, {sC}, {T3}')
        p(f's_lshl_b32 {sR2}, {T1}, 3\ns_add_u32 {sR2}, {sR2}, {T2}\ns_lshl_b32 {sC2}, {T0}, 2\ns_add_u32 {sC2}, {sC2}, {T3}')
        p(f's_lshl_b32 {sS2}, {T0}, 7\ns_lshl_b32 {T1}, {T1}, 5\ns_add_u32 {sS2}, {sS2}, {T1}\ns_add_u32 {sS2}, {sS2}, {sJ}')
        p(f's_lshl_b32 {sREC}, {sXCD}, 5\ns_add_u32 {sREC}, {sREC}, {sJ}')
        p(f's_and_b32 {T0}, {sC}, 1\ns_lshl_b32 {T0}, {T0}, 6\ns_mul_i32 {T1}, {sC}, 192\ns_add_u32 {sOFFA}, {T1}, {T0}')
        p(f's_lshl_b32 {T0}, {T0}, 1\ns_add_u32 {sOFFB}, {T1}, 128\ns_sub_u32 {sOFFB}, {sOFFB}, {T0}')
        p(f's_lshl_b32 {T0}, {sW}, 8\ns_add_u32 {T0}, {T0}, {sS2}\ns_mul_i32 {sXROW}, {T0}, 1280')
        p('s_getpc_b64 s[36:37]\nL_pc:\ns_add_u32 s36, s36, tab_data-L_pc\ns_addc_u32 s37, s37, 0')
        p(f's_mov_b32 s38, {len(self.TAB)*4}\ns_mov_b32 s39, 0x20000')
        p('s_waitcnt lgkmcnt(0)')
        p('s_load_dword s48, s[88:89], 0')
        srd = [(4, 72, 2621440), (8, 74, None), (12, 76, None), (16, 80, 1966080), (20, 82, 1966080), (24, 84, 1966080), (28, 86, 2621440), (32, 88, WS_SIZE)]
        for d, s, n in srd:
            p(f's_mov_b32 s{d}, s{s}\ns_mov_b32 s{d+1}, s{s+1}')
            if n: p(f's_mov_b32 s{d+2}, {n}')
            else: p(f's_add_u32 {T0}, s2, 1\ns_mul_i32 s{d+2}, {T0}, 5136')
            p(f's_mov_b32 s{d+3}, 0x20000')
        if self.stamps:
            self.vST = V.get(2)
            p(f's_lshl_b32 s70, s2, 10\ns_lshl_b32 {T0}, {sW}, 8\ns_add_u32 s70, s70, {T0}\ns_add_u32 s70, s70, {WS_STAMP}')
        p('s_waitcnt lgkmcnt(0)')
        p(f's_mul_i32 {sN}, {sN}, 1664525\ns_add_u32 {sN}, {sN}, 1013904223')
        self.vL16 = V.get(); self.vT16 = V.get(); self.vREC = V.get(); self.vSWZ = V.get()
        t = V.get(); u = V.get()
        p(f'v_lshlrev_b32 v{self.vL16}, 4, v{vL}\nv_lshlrev_b32 v{self.vT16}, 4, v0')
        p(f'v_lshrrev_b32 v{t}, 2, v0\nv_and_b32 v{u}, 3, v0\nv_lshlrev_b32 v{self.vREC}, 14, v{t}\nv_lshl_add_u32 v{self.vREC}, v{u}, 4, v{self.vREC}')
        p(f'v_bfe_u32 v{self.vSWZ}, v0, 4, 2\nv_xor_b32 v{self.vSWZ}, v{self.vSWZ}, v{u}\nv_lshlrev_b32 v{self.vSWZ}, 4, v{self.vSWZ}\nv_lshl_add_u32 v{self.vSWZ}, v{t}, 6, v{self.vSWZ}')
        V.put(t); V.put(u)
        return p

    def dma(self, p, voff, srd, soff, ldsaddr, aux=''):
        if isinstance(ldsaddr, tuple): p(f's_add_u32 m0, {ldsaddr[0]}, {ldsaddr[1]}')
        else: p(f's_mov_b32 m0, {ldsaddr}')
        return p.t(f'buffer_load_dwordx4 v{voff}, {srd}, {soff} offen {aux} lds'.replace('  ', ' '))

    def tab_dma(self, p, first, n, lds):
        toks = []
        p(f's_lshl_b32 {T0}, {sW}, 10')
        for i in range(0, n, 4):
            p(f's_add_u32 {T1}, {T0}, {(first + i) * 1024}')
            toks.append(self.dma(p, self.vL16, sTAB, T1, (T0, lds + i * 1024)))
        return toks

    def kidx(self, p, it, kk):
        p(f's_lshl_b32 {T0}, {sW}, 5\ns_add_u32 {T0}, {T0}, {128*it}\nv_and_b32 v{kk}, 31, v{self.vL}\nv_add_u32 v{kk}, {T0}, v{kk}\nv_min_u32 v{kk}, 320, v{kk}')
    def recoff(self, p, kk, dst):
        V = self.V; a = V.get(); b = V.get()
        p(f'v_mul_u32_u24 v{a}, 6554, v{kk}\nv_lshrrev_b32 v{a}, 16, v{a}\nv_min_u32 v{a}, 31, v{a}')
        p(f'v_mul_u32_u24 v{b}, 10, v{a}\nv_sub_u32 v{b}, v{kk}, v{b}\nv_lshlrev_b32 v{dst}, 6, v{a}')
        p(f'v_mul_u32_u24 v{a}, 21846, v{b}\nv_lshrrev_b32 v{a}, 16, v{a}')
        p(f'v_add_u32 v{b}, v{b}, v{a}\nv_lshl_add_u32 v{dst}, v{b}, 2, v{dst}')
        V.put(a); V.put(b)

    def phase_matrix(self, p, dst, inverse):
        V = self.V; vL = self.vL
        h = V.get(); j = V.get(); hp = V.get(); i = V.get(); ph = V.get(8); t = V.get(); u = V.get(); sg = V.get()
        p(f'v_lshrrev_b32 v{h}, 5, v{vL}\nv_bfe_u32 v{j}, v{vL}, 3, 1\nv_bfe_u32 v{hp}, v{vL}, 2, 1\nv_and_b32 v{i}, 3, v{vL}')
        if not inverse:
            f1 = j
            p(f'v_lshlrev_b32 v{j}, 2, v{j}\nv_lshl_add_u32 v{j}, v{hp}, 1, v{j}\nv_lshrrev_b32 v{t}, 1, v{i}\nv_add_u32 v{f1}, v{j}, v{t}')
            p(f'v_lshlrev_b32 v{sg}, 9, v{t}\nv_sub_u32 v{sg}, 256, v{sg}')
            p(f'v_and_b32 v{i}, 1, v{i}\nv_lshlrev_b32 v{i}, 9, v{i}')
            for d in range(2):
                p(f'v_lshlrev_b32 v{t}, 9, v{h}\nv_add_u32 v{t}, {256*d}, v{t}\nv_add_u32 v{t}, {sS2}, v{t}\nv_mul_u32_u24 v{t}, v{t}, v{f1}')
                p(f'v_sub_u32 v{t}, 0, v{t}')
                p(f'v_sub_u32 v{u}, v{t}, v{sg}\nv_sub_u32 v{ph+2*d}, v{u}, v{i}\nv_add_u32 v{ph+2*d+1}, 512, v{ph+2*d}')
                p(f'v_add_u32 v{u}, v{t}, v{sg}\nv_sub_u32 v{ph+4+2*d}, v{u}, v{i}\nv_subrev_u32 v{ph+4+2*d+1}, 512, v{ph+4+2*d}')
            K = 1 / math.sqrt(2)
        else:
            pp = j
            p(f'v_lshl_add_u32 v{pp}, v{j}, 1, v{hp}\nv_lshlrev_b32 v{pp}, 8, v{pp}\nv_add_u32 v{pp}, {sS2}, v{pp}')
            p(f'v_lshrrev_b32 v{t}, 1, v{i}\nv_lshlrev_b32 v{t}, 1, v{t}\nv_sub_u32 v{sg}, 1, v{t}')
            p(f'v_mul_i32_i24 v{pp}, v{pp}, v{sg}\nv_lshlrev_b32 v{sg}, 9, v{sg}')
            p(f'v_and_b32 v{i}, 1, v{i}\nv_lshlrev_b32 v{i}, 9, v{i}\nv_lshlrev_b32 v{h}, 2, v{h}')
            for ii in range(4):
                p(f'v_add_u32 v{t}, {ii}, v{h}\nv_mul_i32_i24 v{t}, v{t}, v{pp}')
                p(f'v_add_u32 v{t}, {hx(256 if ii % 2 == 0 else -256)}, v{t}\nv_sub_u32 v{ph+2*ii}, v{t}, v{i}\nv_add_u32 v{ph+2*ii+1}, v{ph+2*ii}, v{sg}')
            K = math.sqrt(2) / (2048 * 640)
        for e in range(8):
            p(f'v_and_b32 v{ph+e}, 2047, v{ph+e}\nv_cvt_f32_u32 v{ph+e}, v{ph+e}\nv_mul_f32 v{ph+e}, {hx(f2u(1/2048))}, v{ph+e}')
        for e in range(8): p(f'v_cos_f32 v{ph+e}, v{ph+e}')
        for e in range(8): p(f'v_mul_f32 v{ph+e}, {hx(f2u(K))}, v{ph+e}')
        for d in range(4): p(f'v_cvt_pk_bf16_f32 v{dst+d}, v{ph+2*d}, v{ph+2*d+1}')
        for x in (h, j, hp, i, t, u, sg): V.put(x)
        V.put(ph, 8)

    def allsum32(self, p, x, t):
        for n in (8, 4, 2, 1): p(f'v_add_f32_dpp v{x}, v{x}, v{x} row_ror:{n} row_mask:0xf bank_mask:0xf')
        p(f'v_mov_b32 v{t}, v{x}\nv_permlane16_swap_b32 v{x}, v{t}\nv_add_f32 v{x}, v{x}, v{t}')

    def cmul(self, p, re, im, c, s, t, inverse):
        p(f'v_mul_f32 v{t}, v{re}, v{s}\nv_mul_f32 v{re}, v{re}, v{c}')
        if not inverse: p(f'v_fmac_f32 v{re}, v{im}, v{s}\nv_fma_f32 v{im}, v{im}, v{c}, -v{t}')
        else: p(f'v_fma_f32 v{re}, -v{im}, v{s}, v{re}\nv_fma_f32 v{im}, v{im}, v{c}, v{t}')

    def store_records(self, p, lds_from, swz, base_expr):
        V = self.V; q = V.get(16, 4); a = V.get()
        p(f'v_add_u32 v{a}, {lds_from}, v{self.vSWZ if swz else self.vT16}')
        for i in range(4): p(f'ds_read_b128 {vr(q+4*i,4)}, v{a} offset:{4096*i}')
        base_expr(p)
        toks = []
        for i in range(4):
            p(f'v_mov_b32 v{q+4*i+3}, {sN}')
            if i: p(f's_add_u32 {T0}, {T0}, {MB}')
            toks.append(p.t(f'buffer_store_dwordx4 {vr(q+4*i,4)}, v{self.vREC}, {sWS}, {T0} offen sc1'))
        V.put(q, 16); V.put(a)
        return toks

    def load_records(self, p, base_expr, lds_to, swz, name):
        V = self.V; q = V.get(16, 4); a = V.get()
        def load(p):
            base_expr(p)
            for i in range(4):
                if i: p(f's_add_u32 {T0}, {T0}, 4096')
                p(f'buffer_load_dwordx4 {vr(q+4*i,4)}, v{self.vT16}, {sWS}, {T0} offen sc1')
        def check(p):
            p(f'v_xor_b32 v{a}, {sN}, v{q+3}')
            for i in range(1, 4): p(f'v_xor_b32 v{q+4*i+3}, {sN}, v{q+4*i+3}\nv_or_b32 v{a}, v{a}, v{q+4*i+3}')
            p(f'v_cmp_ne_u32 vcc, 0, v{a}')
        self.poll(p, load, check, name)
        p(f'v_add_u32 v{a}, {lds_to}, v{self.vSWZ if swz else self.vT16}')
        for i in range(4): p(f'ds_write_b128 v{a}, {vr(q+4*i,4)} offset:{4096*i}')
        V.put(q, 16); V.put(a)

    def tab_read(self, p, name, lds, first, dst, k='v'):
        p(f'ds_read_b128 {vr(dst,4,k)}, v{self.vL16} offset:{lds + (self.tn[name] - first) * 1024}')

    def stage1(self):
        p = Prog(); V = self.V; vL = self.vL
        XN = L_C2; ZS = L_C3; VS = L_C1
        self.vXR = XR = V.get(10); self.vROW = V.get(); self.vNAT = V.get()
        t = V.get(); u = V.get()
        p(f'v_lshrrev_b32 v{t}, 5, v{vL}\nv_and_b32 v{u}, 31, v{vL}\nv_lshlrev_b32 v{u}, 3, v{u}')
        p(f'v_mul_u32_u24 v{self.vROW}, 1310720, v{t}\nv_add_u32 v{self.vROW}, v{self.vROW}, v{u}')
        for i in range(5): p(f'buffer_load_dwordx2 {vr(XR+2*i,2)}, v{self.vROW}, {sX}, {sXROW} offen offset:{256*i}')
        tk = self.tab_dma(p, 0, 20, L_C1)
        tk2 = self.tab_dma(p, self.n1, 12, L_T23)
        p(f'v_mul_u32_u24 v{t}, 1280, v{t}\ns_mul_i32 {T0}, {sW}, 2560\nv_add3_u32 v{self.vNAT}, v{t}, v{u}, {T0}')
        M = V.get(4, 4); self.phase_matrix(p, M, False)
        self.vKK = V.get(3); self.vRO = V.get(3)
        for it in range(3):
            self.kidx(p, it, self.vKK + it); self.recoff(p, self.vKK + it, self.vRO + it)
        self.stamp(p, 'I.setup')
        c = V.get(20); sm = V.get(); vr_ = V.get();
        for i in range(10): p(f'v_lshlrev_b32 v{c+2*i}, 16, v{XR+i}\nv_and_b32 v{c+2*i+1}, 0xffff0000, v{XR+i}')
        a2 = V.get(2)
        p(f'v_pk_add_f32 {vr(a2,2)}, {vr(c,2)}, {vr(c+2,2)}')
        for i in range(2, 10): p(f'v_pk_add_f32 {vr(a2,2)}, {vr(a2,2)}, {vr(c+2*i,2)}')
        p(f'v_add_f32 v{sm}, v{a2}, v{a2+1}')
        self.allsum32(p, sm, t)
        p(f'v_mul_f32 v{sm}, {hx(f2u(1/640))}, v{sm}')
        for i in range(20): p(f'v_sub_f32 v{c+i}, v{c+i}, v{sm}')
        p(f'v_pk_mul_f32 {vr(a2,2)}, {vr(c,2)}, {vr(c,2)}')
        for i in range(1, 10): p(f'v_pk_fma_f32 {vr(a2,2)}, {vr(c+2*i,2)}, {vr(c+2*i,2)}, {vr(a2,2)}')
        p(f'v_add_f32 v{vr_}, v{a2}, v{a2+1}')
        self.allsum32(p, vr_, t)
        p(f'v_mov_b32 v{t}, {hx(f2u(1e-5))}\nv_fmac_f32 v{t}, {hx(f2u(1/640))}, v{vr_}\nv_rsq_f32 v{u}, v{t}')
        st = V.get(4, 4); sa = V.get()
        p(f'v_mov_b32 v{st}, v{sm}\nv_mov_b32 v{st+1}, v{t}\nv_mov_b32 v{st+2}, {sN}\nv_mov_b32 v{st+3}, {sN}')
        p(f'v_lshrrev_b32 v{sa}, 5, v{vL}\nv_lshlrev_b32 v{sa}, 6, v{sa}')
        p(f's_lshl_b32 {T0}, {sS2}, 7\ns_lshl_b32 {T1}, {sW}, 4\ns_add_u32 {T0}, {T0}, {T1}\ns_add_u32 {T0}, {T0}, {WS_STATS}')
        p(f's_mov_b32 exec_lo, 1\ns_mov_b32 exec_hi, 1\nbuffer_store_dwordx4 {vr(st,4)}, v{sa}, {sWS}, {T0} offen sc1\ns_mov_b64 exec, -1')
        for i in range(20): p(f'v_mul_f32 v{c+i}, v{c+i}, v{u}')
        for i in range(10): p(f'v_cvt_pk_bf16_f32 v{c+i}, v{c+2*i}, v{c+2*i+1}')
        for i in range(5): p(f'ds_write_b64 v{self.vNAT}, {vr(c+2*i,2)} offset:{XN + 256*i}')
        V.put(st, 4); V.put(sa); V.put(a2, 2); V.put(sm); V.put(vr_); V.put(c, 20)
        ta = V.get()
        p(f'v_bfe_u32 v{t}, v{vL}, 2, 2\nv_lshrrev_b32 v{u}, 5, v{vL}\nv_lshl_add_u32 v{t}, v{u}, 2, v{t}\nv_mul_u32_u24 v{ta}, 40, v{t}')
        p(f'v_and_b32 v{t}, 3, v{vL}\nv_lshlrev_b32 v{t}, 3, v{t}\nv_bfe_u32 v{u}, v{vL}, 4, 1\nv_cmp_eq_u32 vcc, 1, v{u}\nv_cndmask_b32 v{t}, v{t}, 32, vcc'.replace(f'v_cndmask_b32 v{t}, v{t}, 32, vcc', f'v_cndmask_b32_e64 v{t}, v{t}, 32, vcc'))
        p(f's_mul_i32 {T0}, {sW}, 2560\nv_add3_u32 v{ta}, v{ta}, v{t}, {T0}')
        A = V.get(16, 4)
        for comp in range(2):
            for tt in range(2):
                for e in range(2): p(f'ds_read_b64_tr_b16 {vr(A+8*comp+4*tt+2*e,2)}, v{ta} offset:{XN + comp*1280 + tt*640 + e*320}')
        V.put(ta)
        p.wait(tk); p.barrier()
        self.vF32 = F32 = V.get(24, 4); self.vTW = TW = V.get(32, 4); F20 = V.get(20, 4)
        for i, n in enumerate(('C32_0', 'C32_1', 'S32_0', 'S32_1', 'N32_0', 'N32_1')): self.tab_read(p, n, L_C1, 0, F32 + 4 * i)
        for j in range(4): self.tab_read(p, f'TWC_{j}', L_C1, 0, TW + 4 * j); self.tab_read(p, f'TWS_{j}', L_C1, 0, TW + 16 + 4 * j)
        for i, n in enumerate(('C20', 'S20', 'N20', 'MRE', 'MIM')): self.tab_read(p, n, L_C1, 0, F20 + 4 * i)
        DR = V.get(16, 4); DI = V.get(16, 4)
        mf = 'v_mfma_f32_32x32x16_bf16'
        C_, S_, N_ = F32, F32 + 8, F32 + 16
        seq = [(DR, A, C_), (DI, A + 8, C_), (DR, A + 4, C_ + 4), (DI, A + 12, C_ + 4), (DR, A + 8, S_), (DI, A, N_), (DR, A + 12, S_ + 4), (DI, A + 4, N_ + 4)]
        for n, (d, a, b) in enumerate(seq): p(f'{mf} {vr(d,16)}, {vr(a,4)}, {vr(b,4)}, {"0" if n < 2 else vr(d,16)}')
        for r in range(12): self.cmul(p, DR + r, DI + r, TW + r, TW + 16 + r, t, False)
        B = A
        for d in range(4): p(f'v_cvt_pk_bf16_f32 v{B+d}, v{DR+2*d}, v{DR+2*d+1}\nv_cvt_pk_bf16_f32 v{B+4+d}, v{DI+2*d}, v{DI+2*d+1}')
        for d in range(2): p(f'v_cvt_pk_bf16_f32 v{B+8+d}, v{DR+8+2*d}, v{DR+9+2*d}\nv_cvt_pk_bf16_f32 v{B+10+d}, v{DI+8+2*d}, v{DI+9+2*d}')
        seq = [(DR, F20, B), (DI, F20 + 8, B), (DR, F20 + 4, B + 4), (DI, F20, B + 4), (DR, F20 + 12, B + 8), (DI, F20 + 16, B + 8)]
        for n, (d, a, b) in enumerate(seq): p(f'{mf} {vr(d,16)}, {vr(a,4)}, {vr(b,4)}, {"0" if n < 2 else vr(d,16)}')
        za = V.get()
        p(f'v_and_b32 v{t}, 31, v{vL}\nv_lshrrev_b32 v{u}, 5, v{vL}\nv_lshl_add_u32 v{t}, v{u}, 7, v{t}\nv_lshlrev_b32 v{t}, 2, v{t}\ns_mul_i32 {T0}, {sW}, 3072\nv_add_u32 v{za}, {T0}, v{t}')
        self.vZA = za
        for r in range(12): p(f'v_cvt_pk_bf16_f32 v{A+r}, v{DR+r}, v{DI+r}')
        for r in range(12): p(f'ds_write_b32 v{za}, v{A+r} offset:{ZS + (8*(r>>2) + (r&3))*128}')
        V.put(F20, 20)
        aF = V.get(3); aM = V.get(3); aV = V.get(3)
        p(f'v_lshrrev_b32 v{u}, 5, v{vL}\nv_mul_u32_u24 v{u}, 6144, v{u}\nv_add_u32 v{u}, {ZS}, v{u}')
        for it in range(3):
            kk = self.vKK + it
            p(f'v_lshl_add_u32 v{aF+it}, v{kk}, 2, v{u}\nv_sub_u32 v{t}, 640, v{kk}\nv_cmp_eq_u32 vcc, 0, v{kk}\nv_cndmask_b32_e64 v{t}, v{t}, 0, vcc\nv_lshl_add_u32 v{aM+it}, v{t}, 2, v{u}')
        p(f'v_lshrrev_b32 v{u}, 5, v{vL}\nv_lshlrev_b32 v{u}, 12, v{u}\nv_add_u32 v{u}, {VS}, v{u}')
        for it in range(3): p(f'v_add_u32 v{aV+it}, v{self.vRO+it}, v{u}')
        p.barrier()
        D3 = [DR, DI, V.get(16, 4)]
        for it in range(3):
            p(f'ds_read2st64_b32 {vr(A+4*it,2)}, v{aF+it} offset0:0 offset1:12\nds_read2st64_b32 {vr(A+4*it+2,2)}, v{aM+it} offset0:0 offset1:12')
        for it in range(3): p(f'{mf} {vr(D3[it],16)}, {vr(M,4)}, {vr(A+4*it,4)}, 0')
        for it in range(3):
            for d in range(4): p(f'v_cvt_pk_bf16_f32 v{D3[it]+8+d}, v{D3[it]+2*d}, v{D3[it]+2*d+1}')
            for d in range(4): p(f'ds_write_b32 v{aV+it}, v{D3[it]+8+d} offset:{(d&1)*2048 + (d>>1)*8192}')
        V.put(D3[2], 16); V.put(DR, 16); V.put(DI, 16); V.put(A, 16); V.put(aF, 3); V.put(aM, 3); V.put(aV, 3); V.put(M, 4)
        p.barrier()
        self.store_records(p, VS, False, lambda p: p(f's_lshl_b32 {T0}, {sS2}, 6\ns_add_u32 {T0}, {T0}, {WS_V}'))
        V.put(t); V.put(u)
        p.wait(tk2)
        self.stamp(p, 'I.done')
        return p

    def packs(self):
        p = Prog(); V = self.V; vL = self.vL
        WL = L_C2; W2L = L_XS
        p.barrier()
        tk = []
        p(f's_mul_i32 {T2}, s2, 5136\ns_lshl_b32 {T0}, {sW}, 10\ns_add_u32 {T1}, {T2}, {T0}')
        for a, srd in enumerate((sWR, sWI)):
            tk.append(self.dma(p, self.vL16, srd, T1, (T0, WL + a * 8192)))
        p(f's_add_u32 {T1}, {T1}, 4096')
        for a, srd in enumerate((sWR, sWI)):
            tk.append(self.dma(p, self.vL16, srd, T1, (T0, WL + a * 8192 + 4096)))
        t = V.get(); u = V.get(); a2 = V.get()
        p(f's_min_u32 {T2}, s2, 239\ns_mul_i32 {T3}, {T2}, 52429\ns_lshr_b32 {T3}, {T3}, 18\ns_mul_i32 {T4}, {T3}, 5\ns_sub_u32 {T4}, {T2}, {T4}')
        p(f'v_lshrrev_b32 v{t}, 4, v{vL}\nv_mul_u32_u24 v{t}, 1280, v{t}\nv_and_b32 v{u}, 15, v{vL}\nv_lshl_add_u32 v{a2}, v{u}, 4, v{t}')
        p(f's_lshl_b32 {T0}, {T3}, 2\ns_add_u32 {T0}, {T0}, {sW}\ns_mul_i32 {T0}, {T0}, 10240\ns_lshl_b32 {T1}, {T4}, 8\ns_add_u32 {T0}, {T0}, {T1}\ns_lshl_b32 {T1}, {sW}, 11')
        tk.append(self.dma(p, a2, sW2, T0, (T1, W2L)))
        p(f's_add_u32 {T0}, {T0}, 5120')
        tk.append(self.dma(p, a2, sW2, T0, (T1, W2L + 1024)))
        p(f'v_and_b32 v{t}, 3, v0\nv_mul_u32_u24 v{t}, 6, v{t}\nv_bfe_u32 v{u}, v0, 2, 5\nv_mul_u32_u24 v{u}, 20, v{u}\nv_add_u32 v{t}, v{t}, v{u}')
        p(f'v_lshrrev_b32 v{u}, 7, v0\nv_mul_u32_u24 v{u}, 642, v{u}\nv_add_u32 v{t}, v{t}, v{u}')
        p(f'v_lshrrev_b32 v{u}, 5, v{vL}\nv_lshlrev_b32 v{a2}, 12, v{u}\nv_bfe_u32 v{u}, v{vL}, 2, 3\nv_lshl_add_u32 v{a2}, v{u}, 8, v{a2}')
        p(f'v_and_b32 v{u}, 3, v{vL}\nv_lshl_add_u32 v{a2}, v{u}, 3, v{a2}\ns_lshl_b32 {T0}, {sW}, 6\ns_add_u32 {T0}, {T0}, {W2L}\nv_add_u32 v{a2}, {T0}, v{a2}')
        p.wait(tk); p.barrier()
        q = V.get(16, 4); f = V.get(8, 4); q2 = V.get(12)
        for fi in range(2):
            for e in range(2): p(f'ds_read_b64_tr_b16 {vr(f+4*fi+2*e,2)}, v{a2} offset:{e*2048 + fi*32}')
        for i in range(4):
            for jj in range(3):
                p(f'ds_read_u16 v{q+4*i+jj}, v{t} offset:{WL + i*1284 + 2*jj}\nds_read_u16 v{q2+3*i+jj}, v{t} offset:{WL + 8192 + i*1284 + 2*jj}')
        p(f's_mul_i32 {T0}, {T3}, 40\ns_lshl_b32 {T1}, {T4}, 3\ns_add_u32 {T0}, {T0}, {T1}\ns_lshl_b32 {T1}, {sW}, 1\ns_add_u32 {T0}, {T0}, {T1}\ns_lshl_b32 {T0}, {T0}, 10\ns_add_u32 {T0}, {T0}, {WS_W2P}')
        st = [p.t(f'buffer_store_dwordx4 {vr(f+4*fi,4)}, v{self.vL16}, {sWS}, {T0} offen offset:{1024*fi} sc1') for fi in range(2)]
        p(f's_lshl_b32 {T0}, s2, 6\ns_add_u32 {T0}, {T0}, {WS_WP}')
        for i in range(4):
            for jj in range(3): p(f'v_lshl_or_b32 v{q+4*i+jj}, v{q2+3*i+jj}, 16, v{q+4*i+jj}')
            p(f'v_mov_b32 v{q+4*i+3}, {sN}')
            if i: p(f's_add_u32 {T0}, {T0}, {MB}')
            p(f'buffer_store_dwordx4 {vr(q+4*i,4)}, v{self.vREC}, {sWS}, {T0} offen sc1')
        V.put(q2, 12)
        p.wait(st); p.barrier()
        self.flag(p, lambda p: p(f's_lshl_b32 {T0}, s2, 2\ns_add_u32 {T0}, {T0}, {WS_W2F}'), wave0=True)
        V.put(q, 16); V.put(f, 8); V.put(t); V.put(u); V.put(a2)
        self.stamp(p, 'packs')
        return p

    def flag(self, p, addr, wave0=False):
        V = self.V; t = V.get()
        addr(p)
        if wave0: p(f's_cmp_eq_u32 {sW}, 0\ns_cselect_b32 {T0}, {T0}, {hx(0xfffffff0)}')
        p(f'v_mov_b32 v{t}, {sN}\ns_mov_b64 exec, 1\nbuffer_store_dword v{t}, v{self.vZERO}, {sWS}, {T0} offen sc1\ns_mov_b64 exec, -1')
        V.put(t)

    def g1_setup(self):
        p = Prog(); V = self.V; vL = self.vL
        self.vXD = V.get(2); self.vWDA = V.get(); self.vWDB = V.get(); self.vXA = V.get(4); self.vWA = V.get(8); self.vWB = V.get(4); self.vSEL = V.get(4, 4)
        t = V.get(); u = V.get(); x = V.get(); y = V.get()
        p(f'v_lshrrev_b32 v{t}, 3, v{vL}\nv_mul_u32_u24 v{x}, 1280, v{t}\nv_and_b32 v{u}, 7, v{vL}\nv_lshrrev_b32 v{y}, 4, v{vL}\nv_xor_b32 v{y}, v{y}, v{u}')
        p(f'v_lshl_add_u32 v{self.vXD}, v{y}, 4, v{x}\nv_xor_b32 v{y}, 4, v{y}\nv_lshl_add_u32 v{self.vXD+1}, v{y}, 4, v{x}')
        p(f'v_mul_u32_u24 v{x}, 3072, v{t}\nv_bfe_u32 v{y}, v{vL}, 4, 1\nv_lshlrev_b32 v{y}, 2, v{y}\nv_xor_b32 v{y}, v{y}, v{u}\nv_lshl_add_u32 v{self.vWDA}, v{y}, 4, v{x}')
        p(f'v_lshrrev_b32 v{t}, 2, v{vL}\nv_mul_u32_u24 v{x}, 3072, v{t}\nv_and_b32 v{u}, 3, v{vL}\nv_lshl_add_u32 v{self.vWDB}, v{u}, 4, v{x}')
        p(f'v_and_b32 v{t}, 31, v{vL}\nv_lshlrev_b32 v{x}, 7, v{t}\ns_mul_i32 {sXB}, {sW}, 12288\ns_add_u32 {sXB}, {sXB}, {L_XS}\nv_add_u32 v{x}, {sXB}, v{x}\nv_bfe_u32 v{t}, v{vL}, 1, 3\nv_lshrrev_b32 v{u}, 5, v{vL}\nv_xor_b32 v{t}, v{t}, v{u}')
        for s in range(4):
            p(f's_add_u32 {T0}, {sW}, {s}\ns_and_b32 {T0}, {T0}, 3\ns_lshl_b32 {T0}, {T0}, 1\nv_xor_b32 v{y}, {T0}, v{t}\nv_lshl_add_u32 v{self.vXA+s}, v{y}, 4, v{x}')
        p(f'v_bfe_u32 v{t}, v{vL}, 2, 2\nv_lshl_add_u32 v{t}, v{u}, 3, v{t}\nv_bfe_u32 v{x}, v{vL}, 4, 1\nv_lshlrev_b32 v{x}, 5, v{x}\nv_and_b32 v{y}, 3, v{vL}\nv_lshl_add_u32 v{x}, v{y}, 3, v{x}')
        p(f'v_add_u32 v{x}, {L_RING}, v{x}\nv_lshl_add_u32 v{y}, v{t}, 6, v{x}\nv_lshl_add_u32 v{x}, v{t}, 7, v{x}\nv_bfe_u32 v{t}, v{vL}, 3, 1\nv_lshl_add_u32 v{x}, v{t}, 6, v{x}')
        for s in range(4):
            p(f's_add_u32 {T0}, {sW}, {s}\ns_and_b32 {T0}, {T0}, 3\ns_lshl_b32 {T1}, {T0}, 11\ns_lshl_b32 {T0}, {T0}, 10')
            p(f'v_add_u32 v{self.vWA+2*s}, {T1}, v{x}\nv_xor_b32 v{self.vWA+2*s+1}, 64, v{self.vWA+2*s}\nv_add_u32 v{self.vWB+s}, {T0}, v{y}')
        p(f'v_and_b32 v{t}, 15, v{vL}\nv_bfe_u32 v{u}, v{vL}, 4, 1\nv_mov_b32 v{x}, 0x3f803f80\nv_cmp_eq_u32 vcc, v{t}, v{u}')
        for i in range(4): p(f'v_cndmask_b32 v{self.vSEL+i}, 0, v{x}, vcc')
        p(f's_lshl_b32 {T0}, {sW}, 9\ns_lshl_b32 {T1}, {sR}, 4\ns_add_u32 {T0}, {T0}, {T1}\ns_mul_i32 s71, {T0}, 1280')
        p(f's_mul_i32 {T0}, {sW}, {16*3072}\ns_add_u32 s90, {T0}, {sOFFA}\ns_mul_i32 {T0}, {sW}, {32*3072}\ns_add_u32 s91, {T0}, {sOFFB}\ns_lshl_b32 s92, {sW}, 11')
        for x_ in (t, u, x, y): V.put(x_)
        return p
    def x_dma(self, p, ch):
        tk = []
        for q in range(4):
            p(f's_add_u32 {T5}, s71, {((q>>1)*256 + 8*(q&1))*1280 + ch*128}')
            tk.append(self.dma(p, self.vXD + (q & 1), sX, T5, (sXB, (ch % 3) * 4096 + q * 1024)))
        return tk
    def wa_dma(self, p, ch):
        tk = []
        for mu in range(2):
            for o in range(2):
                p(f's_add_u32 {T5}, s90, {(64*ch + 8*o)*3072}')
                tk.append(self.dma(p, self.vWDA, (sW1, sW3)[mu], T5, ('s92', L_RING + (ch % 3) * 16384 + mu * 8192 + o * 1024)))
        return tk
    def wb_dma(self, p, ch, slot):
        tk = []
        for mu in range(2):
            for o in range(2):
                p(f's_add_u32 {T5}, s91, {(128*ch + 16*o)*3072}')
                tk.append(self.dma(p, self.vWDB, (sW1, sW3)[mu], T5, ('s92', L_RING + slot * 16384 + mu * 8192 + o * 1024)))
        return tk

    def g1a(self):
        p = Prog(); V = self.V
        mf = 'v_mfma_f32_32x32x16_bf16'; m16 = 'v_mfma_f32_16x16x32_bf16'
        self.vACC = V.get(64, 4); self.vCS = V.get(16, 4); FR = V.get(32, 4)
        ACC = self.vACC; CS = self.vCS
        p.barrier()
        tx = {}; tw = {}
        for ch in range(2): tx[ch] = self.x_dma(p, ch); tw[ch] = self.wa_dma(p, ch)
        PF = 3
        seq = [(ch, t, q) for ch in range(10) for t in range(4) for q in range(4)]
        fr = lambda i: FR + 4 * (i % 8)
        def rd(i):
            ch, t, q = seq[i]
            if t == 0 and q == 0:
                p.wait(tx[ch], tw[ch]); p('s_barrier')
                if ch + 2 < 10: pass
            if q == 0: p(f'ds_read_b128 {ar(16*ch+4*t,4)}, v{self.vXA+t} offset:{(ch%3)*4096}')
            for e in range(2): p(f'ds_read_b64_tr_b16 {vr(fr(i)+2*e,2)}, v{self.vWA+2*t+(q&1)} offset:{(ch%3)*16384 + (q>>1)*8192 + e*512}')
        for i in range(PF): rd(i)
        for i, (ch, t, q) in enumerate(seq):
            if i + PF < len(seq): rd(i + PF)
            first = (ch == 0 and t == 0)
            p(f'{mf} {vr(ACC+16*q,16)}, {vr(fr(i),4)}, {ar(16*ch+4*t,4)}, {"0" if first else vr(ACC+16*q,16)}')
            if t == 0: p(f'{m16} {vr(CS+4*q,4)}, {vr(self.vSEL,4)}, {vr(fr(i),4)}, {"0" if ch == 0 else vr(CS+4*q,4)}')
            if t == 0 and q == 3 and ch + 2 < 10:
                tx[ch + 2] = self.x_dma(p, ch + 2); tw[ch + 2] = self.wa_dma(p, ch + 2)
        V.put(FR, 32)
        self.cs_publish(p, range(4), [CS + 4 * q for q in range(4)])
        V.put(CS, 16)
        self.stamp(p, 'G1a')
        return p

    def stats_load(self, p):
        V = self.V; vL = self.vL
        st = V.get(4, 4); a = V.get(); t = V.get()
        p(f'v_and_b32 v{a}, 15, v{vL}\nv_lshlrev_b32 v{a}, 7, v{a}\nv_bfe_u32 v{t}, v{vL}, 4, 1\nv_lshl_add_u32 v{a}, v{t}, 4, v{a}')
        def load(p):
            p(f's_lshl_b32 {T0}, {sR}, 11\ns_lshl_b32 {T1}, {sW}, 5\ns_add_u32 {T0}, {T0}, {T1}\ns_add_u32 {T0}, {T0}, {WS_STATS}')
            p(f'buffer_load_dwordx4 {vr(st,4)}, v{a}, {sWS}, {T0} offen sc1')
        self.poll(p, load, lambda p: p(f'v_cmp_ne_u32 vcc, {sN}, v{st+3}'), 'st')
        self.vBM = BM = V.get(4, 4); self.vIR2 = V.get(); self.vC1 = V.get()
        p(f'v_mov_b32 v{self.vIR2}, v{st+1}\nv_rsq_f32 v{self.vC1}, v{st+1}\nv_mul_f32 v{self.vC1}, {hx(f2u(-LOG2E))}, v{self.vC1}')
        p(f'v_cmp_gt_u32 vcc, 32, v{vL}\nv_sub_f32 v{st}, 0, v{st}\nv_cndmask_b32 v{st}, 0, v{st}, vcc')
        p(f'v_and_b32 v{st+1}, 0xffff0000, v{st}\nv_sub_f32 v{st}, v{st}, v{st+1}\nv_and_b32 v{st+2}, 0xffff0000, v{st}\nv_sub_f32 v{st}, v{st}, v{st+2}')
        p(f's_mov_b32 {T0}, 0x07060302')
        p(f'v_perm_b32 v{BM}, v{st+2}, v{st+1}, {T0}\nv_perm_b32 v{BM+1}, v{st}, v{st+1}, {T0}\nv_perm_b32 v{BM+2}, v{st+1}, v{st+2}, {T0}\nv_mov_b32 v{BM+3}, 0')
        V.put(st, 4); V.put(a); V.put(t)

    def cs_publish(self, p, tiles, regs):
        V = self.V; a = V.get()
        p(f'v_lshlrev_b32 v{a}, 4, v{self.vL}\ns_lshl_b32 {T0}, {sW}, 2\nv_add_u32 v{a}, {T0}, v{a}\nv_add_u32 v{a}, {L_CS}, v{a}\ns_mov_b64 exec, 0xffff')
        for tl, r in zip(tiles, regs): p(f'ds_write2st64_b32 v{a}, v{r}, v{r+1} offset0:{2*tl} offset1:{2*tl+1}')
        p('s_mov_b64 exec, -1')
        V.put(a)
    def correct(self, p, tile, acc):
        V = self.V; q = V.get(4, 4); a = V.get()
        p(f'v_and_b32 v{a}, 31, v{self.vL}\nv_lshlrev_b32 v{a}, 4, v{a}\nds_read_b128 {vr(q,4)}, v{a} offset:{L_CS + 512*tile}')
        p(f'v_add_f32 v{q}, v{q}, v{q+1}\nv_add_f32 v{q+2}, v{q+2}, v{q+3}\nv_add_f32 v{q}, v{q}, v{q+2}')
        p(f'v_and_b32 v{q+3}, 0xffff0000, v{q}\nv_sub_f32 v{q}, v{q}, v{q+3}\nv_and_b32 v{a}, 0xffff0000, v{q}\nv_sub_f32 v{q}, v{q}, v{a}')
        p(f's_mov_b32 {T0}, 0x07060302\nv_perm_b32 v{q+2}, v{q}, v{a}, {T0}\nv_perm_b32 v{q+1}, v{q+3}, v{a}, {T0}\nv_perm_b32 v{q}, v{q+3}, v{q+3}, {T0}\nv_mov_b32 v{q+3}, 0')
        p(f'v_mfma_f32_32x32x16_bf16 {vr(acc,16)}, {vr(q,4)}, {vr(self.vBM,4)}, {vr(acc,16)}')
        V.put(q, 4); V.put(a)
    def swiglu(self, p, g, u, pi):
        V = self.V; t = V.get(4)
        for r0 in range(0, 16, 4):
            for r in range(4): p(f'v_mul_f32 v{t+r}, v{g+r0+r}, v{self.vC1}')
            for r in range(4): p(f'v_exp_f32 v{t+r}, v{t+r}')
            for r in range(4): p(f'v_mul_f32 v{g+r0+r}, v{g+r0+r}, v{u+r0+r}')
            for r in range(4): p(f'v_fma_f32 v{t+r}, v{t+r}, v{self.vIR2}, v{self.vIR2}')
            for r in range(4): p(f'v_rcp_f32 v{t+r}, v{t+r}')
            for r in range(4): p(f'v_mul_f32 v{g+r0+r}, v{g+r0+r}, v{t+r}')
            for d in range(2): p(f'v_cvt_pk_bf16_f32 v{u+r0//2+d}, v{g+r0+2*d}, v{g+r0+2*d+1}')
        p(f's_and_b32 {T1}, {sC}, 1\ns_add_u32 {T1}, {T1}, {pi}\ns_cmp_eq_u32 {T1}, 3\ns_cselect_b32 {T1}, 0, {T1}\ns_mul_i32 {T0}, {sC}, 3\ns_add_u32 {T0}, {T0}, {T1}')
        p(f's_lshl_b32 {T1}, {sR}, 3\ns_lshl_b32 {T2}, {sW}, 1\ns_add_u32 {T1}, {T1}, {T2}\ns_mul_i32 {T1}, {T1}, 48\ns_add_u32 {T0}, {T0}, {T1}\ns_lshl_b32 {T0}, {T0}, 10\ns_add_u32 {T0}, {T0}, {WS_H}')
        tk = [p.t(f'buffer_store_dwordx4 {vr(u+4*ab,4)}, v{self.vHA}, {sWS}, {T0} offen offset:{512*ab} sc1') for ab in range(2)]
        V.put(t, 4)
        return tk
    def hflag(self, p, pi):
        def addr(p):
            p(f's_lshl_b32 {T0}, {sR}, 1\ns_lshr_b32 {T1}, {sW}, 1\ns_add_u32 {T0}, {T0}, {T1}\ns_lshl_b32 {T0}, {T0}, 2\ns_lshr_b32 {T1}, {sC}, 2\ns_add_u32 {T0}, {T0}, {T1}\ns_lshl_b32 {T0}, {T0}, 7')
            p(f's_and_b32 {T1}, {sC}, 3\ns_mul_i32 {T1}, {T1}, 24\ns_add_u32 {T0}, {T0}, {T1}\ns_and_b32 {T1}, {sW}, 1\ns_lshl_b32 {T1}, {T1}, 2\ns_add_u32 {T0}, {T0}, {T1}\ns_add_u32 {T0}, {T0}, {WS_HF + 8*pi}')
        self.flag(p, addr)

    def g1b(self):
        p = Prog(); V = self.V; vL = self.vL
        mf = 'v_mfma_f32_32x32x16_bf16'; m16 = 'v_mfma_f32_16x16x32_bf16'
        ACC = self.vACC; CS = V.get(8, 4)
        self.vHA = V.get(); t = V.get()
        p(f'v_bfe_u32 v{t}, v{vL}, 4, 1\nv_mul_u32_u24 v{self.vHA}, 49152, v{t}\nv_lshrrev_b32 v{t}, 5, v{vL}\nv_lshl_add_u32 v{self.vHA}, v{t}, 8, v{self.vHA}\nv_and_b32 v{t}, 15, v{vL}\nv_lshl_add_u32 v{self.vHA}, v{t}, 4, v{self.vHA}')
        V.put(t)
        p.barrier()
        tw = {ch: self.wb_dma(p, ch, ch) for ch in range(3)}
        self.stats_load(p)
        for q in range(4): self.correct(p, q, ACC + 16 * q)
        for pr in range(2):
            tk = self.swiglu(p, ACC + 16 * pr, ACC + 32 + 16 * pr, pr)
            p.wait(tk); self.hflag(p, pr)
        self.stamp(p, 'epi_a')
        FR = V.get(32, 4); PF = 3
        seq = [(ch, u, mu) for ch in range(5) for u in range(8) for mu in range(2)]
        fr = lambda i: FR + 4 * (i % 8)
        def rd(i):
            ch, u, mu = seq[i]
            if u == 0 and mu == 0: p.wait(tw[ch]); p('s_barrier')
            for e in range(2): p(f'ds_read_b64_tr_b16 {vr(fr(i)+2*e,2)}, v{self.vWB+(u&3)} offset:{(ch%3)*16384 + mu*8192 + (u>>2)*4096 + e*256}')
        for i in range(PF): rd(i)
        for i, (ch, u, mu) in enumerate(seq):
            if i + PF < len(seq): rd(i + PF)
            first = (ch == 0 and u == 0)
            p(f'{mf} {vr(ACC+16*mu,16)}, {vr(fr(i),4)}, {ar(32*ch+4*u,4)}, {"0" if first else vr(ACC+16*mu,16)}')
            if (u & 3) == 0: p(f'{m16} {vr(CS+4*mu,4)}, {vr(self.vSEL,4)}, {vr(fr(i),4)}, {"0" if first else vr(CS+4*mu,4)}')
            if u == 1 and mu == 1 and ch >= 1 and ch + 2 < 5: tw[ch + 2] = self.wb_dma(p, ch + 2, (ch + 2) % 3)
        V.put(FR, 32)
        self.cs_publish(p, (4, 5), [CS, CS + 4])
        p.barrier()
        for mu in range(2): self.correct(p, 4 + mu, ACC + 16 * mu)
        tk = self.swiglu(p, ACC, ACC + 16, 2)
        p.wait(tk); self.hflag(p, 2)
        V.put(ACC, 64); V.put(CS, 8); V.put(self.vHA); V.put(self.vBM, 4); V.put(self.vIR2); V.put(self.vC1)
        V.put(self.vXD, 2); V.put(self.vWDA); V.put(self.vWDB); V.put(self.vXA, 4); V.put(self.vWA, 8); V.put(self.vWB, 4); V.put(self.vSEL, 4)
        self.stamp(p, 'G1b')
        return p

    def stage2(self):
        p = Prog(); V = self.V; vL = self.vL
        VI = L_C1; WI = L_C2
        p.barrier()
        self.load_records(p, lambda p: p(f's_lshl_b32 {T0}, {sREC}, 14\ns_add_u32 {T0}, {T0}, {WS_V}'), VI, True, 'v')
        self.load_records(p, lambda p: p(f's_lshl_b32 {T0}, {sREC}, 14\ns_add_u32 {T0}, {T0}, {WS_WP}'), WI, True, 'w')
        self.stamp(p, 'II.in')
        ga = V.get(); t = V.get(); u = V.get()
        p(f'v_bfe_u32 v{t}, v{vL}, 2, 2\nv_xor_b32 v{t}, {sW}, v{t}\nv_lshlrev_b32 v{t}, 4, v{t}\nv_and_b32 v{u}, 15, v{vL}\nv_lshl_add_u32 v{t}, v{u}, 6, v{t}\nv_lshrrev_b32 v{u}, 4, v{vL}\nv_lshl_add_u32 v{ga}, v{u}, 12, v{t}')
        K = V.get(8, 4)
        for i, n in enumerate(('FRE', 'FIM', 'IRE', 'IIM')): self.tab_read(p, n, L_T23, self.n1, 240 + 4 * i, 'a')
        for i, n in enumerate(('TW2C', 'TW2S')): self.tab_read(p, n, L_T23, self.n1, K + 4 * i)
        FRE, FIM, IRE, IIM = (ar(240 + 4 * i, 4) for i in range(4)); TC, TS = K, K + 4
        p.barrier()
        self.flag(p, lambda p: p(f's_cmp_eq_u32 s2, 0\ns_cselect_b32 {T0}, {WS_GEN}, {hx(0xfffffff0)}'), wave0=True)
        q = V.get(16, 4); wq = q; X = V.get(12, 4); DR = V.get(12, 4); DI = V.get(12, 4); wr = V.get(); wi = V.get()
        for i in range(4): p(f'ds_read_b128 {vr(q+4*i,4)}, v{ga} offset:{VI + 1024*i}')
        for j in range(3):
            for i in range(4): p(f'v_mov_b32 v{X+4*j+i}, v{q+4*i+j}')
        for i in range(4): p(f'ds_read_b128 {vr(wq+4*i,4)}, v{ga} offset:{WI + 1024*i}')
        m16 = 'v_mfma_f32_16x16x32_bf16'
        def step(data_is_A, cr, ci):
            for j in range(3):
                for d, cst in ((DR, cr), (DI, ci)):
                    a, b = (vr(X + 4 * j, 4), cst) if data_is_A else (cst, vr(X + 4 * j, 4))
                    p(f'{m16} {vr(d+4*j,4)}, {a}, {b}, 0')
        def pack():
            for j in range(3):
                for i in range(4): p(f'v_cvt_pk_bf16_f32 v{X+4*j+i}, v{DR+4*j+i}, v{DI+4*j+i}')
        step(True, FRE, FIM)
        for j in range(3):
            for i in range(4): self.cmul(p, DR + 4 * j + i, DI + 4 * j + i, TC + i, TS + i, t, False)
        pack(); step(False, FRE, FIM)
        for j in range(3):
            for i in range(4):
                p(f'v_lshlrev_b32 v{wr}, 16, v{wq+4*i+j}\nv_and_b32 v{wi}, 0xffff0000, v{wq+4*i+j}')
                self.cmul(p, DR + 4 * j + i, DI + 4 * j + i, wr, wi, t, True)
        pack(); step(True, IRE, IIM)
        for j in range(3):
            for i in range(4): self.cmul(p, DR + 4 * j + i, DI + 4 * j + i, TC + i, TS + i, t, True)
        pack(); step(False, IRE, IIM)
        for j in range(3):
            for i in range(4): p(f'v_cvt_pk_bf16_f32 v{q+4*i+j}, v{DR+4*j+i}, v{DI+4*j+i}')
        p.barrier()
        for i in range(4): p(f'ds_write_b128 v{ga}, {vr(q+4*i,4)} offset:{VI + 1024*i}')
        p.barrier()
        V.put(q, 16); V.put(X, 12); V.put(DR, 12); V.put(DI, 12); V.put(wr); V.put(wi); V.put(K, 8); V.put(ga); V.put(t); V.put(u)
        self.store_records(p, VI, True, lambda p: p(f's_lshl_b32 {T0}, {sREC}, 6\ns_add_u32 {T0}, {T0}, {WS_VP}'))
        self.stamp(p, 'II.done')
        return p

    def stage3(self):
        p = Prog(); V = self.V; vL = self.vL
        VI = L_C1; PS = L_C3; YL = L_C2
        mf = 'v_mfma_f32_32x32x16_bf16'
        M = V.get(4, 4); self.phase_matrix(p, M, True)
        p.barrier()
        self.load_records(p, lambda p: p(f's_lshl_b32 {T0}, {sS2}, 14\ns_add_u32 {T0}, {T0}, {WS_VP}'), VI, False, 'vp')
        self.stamp(p, 'III.in')
        t = V.get(); u = V.get(); aG = V.get(3); aF = V.get(3); aM = V.get(3); al = V.get(2); be = V.get(2)
        p(f'v_lshrrev_b32 v{u}, 5, v{vL}\nv_lshlrev_b32 v{t}, 13, v{u}\nv_add_u32 v{t}, {VI}, v{t}')
        for it in range(3): p(f'v_add_u32 v{aG+it}, v{self.vRO+it}, v{t}')
        p(f'v_mul_u32_u24 v{u}, 3072, v{u}\nv_add_u32 v{u}, {PS}, v{u}')
        for it in range(3):
            kk = self.vKK + it
            p(f'v_lshl_add_u32 v{aF+it}, v{kk}, 2, v{u}\nv_sub_u32 v{t}, 640, v{kk}')
            if it != 1:
                p(f'v_cmp_eq_u32 vcc, {0 if it == 0 else 320}, v{kk}\nv_mov_b32 v{al+it//2}, 700\nv_cndmask_b32 v{t}, v{t}, v{al+it//2}, vcc')
                p(f'v_cndmask_b32_e64 v{al+it//2}, 1.0, 0.5, vcc\nv_cndmask_b32_e64 v{be+it//2}, 0, 0.5, vcc')
            p(f'v_lshl_add_u32 v{aM+it}, v{t}, 2, v{u}')
        G = V.get(24, 4)
        for i in range(3): self.tab_read(p, f'G20R_{i}', L_T23, self.n1, G + 4 * i); self.tab_read(p, f'G20I_{i}', L_T23, self.n1, G + 12 + 4 * i)
        p.barrier()
        A = V.get(16, 4); D3 = [V.get(16, 4) for _ in range(3)]
        for it in range(3):
            p(f'ds_read2st64_b32 {vr(A+4*it,2)}, v{aG+it} offset0:0 offset1:8\nds_read2st64_b32 {vr(A+4*it+2,2)}, v{aG+it} offset0:16 offset1:24')
        for it in range(3): p(f'{mf} {vr(D3[it],16)}, {vr(M,4)}, {vr(A+4*it,4)}, 0')
        for it in range(3):
            d = D3[it]
            if it != 1:
                for j in range(2):
                    for cc in range(2): p(f'v_mul_f32 v{d+4*j+cc}, v{d+4*j+cc}, v{al+it//2}\nv_fmac_f32 v{d+4*j+cc}, v{d+4*j+2+cc}, v{be+it//2}')
            for e in range(4): p(f'v_cvt_pk_bf16_f32 v{d+8+e}, v{d+2*e}, v{d+2*e+1}')
            for j in range(2): p(f'ds_write_b32 v{aM+it}, v{d+8+2*j+1} offset:{6144*j}\nds_write_b32 v{aF+it}, v{d+8+2*j} offset:{6144*j}')
        V.put(D3[2], 16); DR, DI = D3[0], D3[1]
        V.put(aG, 3); V.put(aF, 3); V.put(aM, 3); V.put(al, 2); V.put(be, 2); V.put(M, 4); V.put(self.vKK, 3); V.put(self.vRO, 3)
        b0 = V.get(3)
        p(f'v_add_u32 v{b0}, {PS}, v{self.vZA}\nv_add_u32 v{b0+1}, 1024, v{b0}\nv_and_b32 v{t}, 31, v{vL}\nv_lshlrev_b32 v{t}, 2, v{t}\ns_mul_i32 {T0}, {sW}, 3072\ns_add_u32 {T0}, {T0}, {PS + 2048}\nv_add_u32 v{b0+2}, {T0}, v{t}')
        V.put(self.vZA)
        p.barrier()
        for tt in range(3): p(f'ds_read2_b32 {vr(A+4*tt,2)}, v{b0+tt} offset0:0 offset1:32\nds_read2_b32 {vr(A+4*tt+2,2)}, v{b0+tt} offset0:64 offset1:96')
        for tt in range(3):
            for d, g in ((DR, G), (DI, G + 12)): p(f'{mf} {vr(d,16)}, {vr(A+4*tt,4)}, {vr(g+4*tt,4)}, {"0" if tt == 0 else vr(d,16)}')
        TW = self.vTW; F32 = self.vF32
        for r in range(16): self.cmul(p, DR + r, DI + r, TW + r, TW + 16 + r, t, True)
        for d in range(8): p(f'v_cvt_pk_bf16_f32 v{A+d}, v{DR+2*d}, v{DR+2*d+1}\nv_cvt_pk_bf16_f32 v{A+8+d}, v{DI+2*d}, v{DI+2*d+1}')
        C_, S_, N_ = F32, F32 + 8, F32 + 16
        seq = [(DR, A, C_), (DI, A, S_), (DR, A + 4, C_ + 4), (DI, A + 4, S_ + 4), (DR, A + 8, N_), (DI, A + 8, C_), (DR, A + 12, N_ + 4), (DI, A + 12, C_ + 4)]
        for n, (d, a, b) in enumerate(seq): p(f'{mf} {vr(d,16)}, {vr(a,4)}, {vr(b,4)}, {"0" if n < 2 else vr(d,16)}')
        ya = V.get()
        p(f'v_and_b32 v{t}, 31, v{vL}\nv_mul_u32_u24 v{t}, 40, v{t}\nv_lshrrev_b32 v{u}, 5, v{vL}\nv_lshl_add_u32 v{t}, v{u}, 3, v{t}\ns_mul_i32 {T0}, {sW}, 2560\nv_add_u32 v{ya}, {T0}, v{t}')
        for comp, d in enumerate((DR, DI)):
            for e in range(6): p(f'v_cvt_pk_bf16_f32 v{A+6*comp+e}, v{d+2*e}, v{d+2*e+1}')
        for comp in range(2):
            for j in range(2): p(f'ds_write_b64 v{ya}, {vr(A+6*comp+2*j,2)} offset:{YL + comp*1280 + 16*j}')
        p('s_mov_b64 exec, 0xffffffff')
        for comp in range(2): p(f'ds_write_b64 v{ya}, {vr(A+6*comp+4,2)} offset:{YL + comp*1280 + 32}')
        p('s_mov_b64 exec, -1')
        for i in range(5): p(f'ds_read_b64 {vr(A+2*i,2)}, v{self.vNAT} offset:{YL + 256*i}')
        XR = self.vXR; tk = []
        p(f's_add_u32 {T0}, {sXROW}, {WS_Y}')
        for i in range(10):
            p(f'v_lshlrev_b32 v{t}, 16, v{A+i}\nv_lshlrev_b32 v{u}, 16, v{XR+i}\nv_add_f32 v{t}, v{t}, v{u}')
            p(f'v_and_b32 v{A+i}, 0xffff0000, v{A+i}\nv_and_b32 v{u}, 0xffff0000, v{XR+i}\nv_add_f32 v{u}, v{A+i}, v{u}\nv_cvt_pk_bf16_f32 v{A+i}, v{t}, v{u}')
            if i & 1: tk.append(p.t(f'buffer_store_dwordx2 {vr(A+i-1,2)}, v{self.vROW}, {sWS}, {T0} offen offset:{128*(i-1)} sc1'))
        p.wait(tk)
        self.flag(p, lambda p: p(f's_lshl_b32 {T0}, {sS2}, 4\ns_lshl_b32 {T1}, {sW}, 2\ns_add_u32 {T0}, {T0}, {T1}\ns_add_u32 {T0}, {T0}, {WS_YF}'))
        V.put(A, 16); V.put(DR, 16); V.put(DI, 16); V.put(G, 24); V.put(b0, 3); V.put(ya); V.put(t); V.put(u)
        V.put(XR, 10); V.put(self.vROW); V.put(self.vNAT); V.put(TW, 32); V.put(F32, 24)
        self.stamp(p, 'III.done')
        return p

    def g2(self):
        p = Prog(); V = self.V; vL = self.vL
        m16 = 'v_mfma_f32_16x16x32_bf16'
        t = V.get(4, 4); u = V.get()
        def ldw(p): p(f's_mov_b32 {T0}, {WS_W2F}\nbuffer_load_dwordx4 {vr(t,4)}, v{self.vL16}, {sWS}, {T0} offen sc1')
        def ckw(p):
            for i in range(4): p(f'v_xor_b32 v{t+i}, {sN}, v{t+i}')
            p(f'v_or_b32 v{t}, v{t}, v{t+1}\nv_or3_b32 v{t}, v{t}, v{t+2}, v{t+3}\nv_cmp_ne_u32 vcc, 0, v{t}')
        self.poll(p, ldw, ckw, 'w2f')
        kap = lambda s: 3 * (s % 4) + ((s // 4) + (s & 1)) % 3
        areg = lambda s: (160 + 20 * s) if s < 4 else 20 * (s - 4)
        p(f's_mul_i32 s71, {sW}, 480\ns_mul_i32 {T0}, {sC2}, 5\ns_add_u32 s71, s71, {T0}\ns_lshl_b32 s71, s71, 10\ns_add_u32 s71, s71, {WS_W2P}')
        for s in range(12):
            p(f's_add_u32 {T0}, s71, {kap(s)*40*1024}')
            for tt in range(5):
                if tt == 4: p(f's_add_u32 {T0}, {T0}, 4096')
                p(f'buffer_load_dwordx4 {ar(areg(s)+4*tt,4)}, v{self.vL16}, {sWS}, {T0} offen offset:{1024*(tt&3)} sc1')
        p(f'v_min_u32 v{u}, 23, v{vL}\nv_lshlrev_b32 v{u}, 2, v{u}')
        def ldh(p): p(f's_lshl_b32 {T0}, {sR2}, 2\ns_add_u32 {T0}, {T0}, {sW}\ns_lshl_b32 {T0}, {T0}, 7\ns_add_u32 {T0}, {T0}, {WS_HF}\nbuffer_load_dword v{t}, v{u}, {sWS}, {T0} offen sc1')
        self.poll(p, ldh, lambda p: p(f'v_cmp_ne_u32 vcc, {sN}, v{t}'), 'hf')
        self.stamp(p, 'G2.in')
        ACC = V.get(80, 4); HF = V.get(64, 4)
        p(f's_mul_i32 s90, {sR2}, {4*48}\ns_mul_i32 {T0}, {sW}, 12\ns_add_u32 s90, s90, {T0}\ns_lshl_b32 s90, s90, 10\ns_add_u32 s90, s90, {WS_H}')
        def ldf(s):
            for rg in range(4):
                p(f's_add_u32 {T0}, s90, {(rg*48 + kap(s))*1024}\nbuffer_load_dwordx4 {vr(HF+16*(s%4)+4*rg,4)}, v{self.vL16}, {sWS}, {T0} offen sc1')
        for s in range(3): ldf(s)
        for s in range(12):
            if s + 3 < 12: ldf(s + 3)
            for rg in range(4):
                for tt in range(5):
                    d = ACC + 4 * (5 * rg + tt)
                    p(f'{m16} {vr(d,4)}, {ar(areg(s)+4*tt,4)}, {vr(HF+16*(s%4)+4*rg,4)}, {"0" if s == 0 else vr(d,4)}')
        self.stamp(p, 'G2.mm')
        p(f'v_lshlrev_b32 v{u}, 2, v{vL}')
        def ldy(p): p(f's_lshr_b32 {T0}, {sR2}, 1\ns_lshl_b32 {T0}, {T0}, 8\ns_add_u32 {T0}, {T0}, {WS_YF}\nbuffer_load_dword v{t}, v{u}, {sWS}, {T0} offen sc1')
        self.poll(p, ldy, lambda p: p(f'v_cmp_ne_u32 vcc, {sN}, v{t}'), 'yf')
        ra = V.get(3); ga = V.get(3); wa = V.get(); Y = V.get(12, 4)
        for i in range(3):
            p(f'v_add_u32 v{t}, {64*i}, v{vL}\nv_min_u32 v{t+1}, 159, v{t}\nv_mul_u32_u24 v{t+2}, 6554, v{t+1}\nv_lshrrev_b32 v{t+2}, 16, v{t+2}\nv_mul_u32_u24 v{t+3}, 10, v{t+2}\nv_sub_u32 v{t+3}, v{t+1}, v{t+3}')
            p(f'v_mul_u32_u24 v{ra+i}, 336, v{t+2}\nv_lshl_add_u32 v{ra+i}, v{t+3}, 5, v{ra+i}\ns_mul_i32 {T0}, {sW}, {16*336}\ns_add_u32 {T0}, {T0}, {L_XS}\nv_add_u32 v{ra+i}, {T0}, v{ra+i}')
            p(f'v_mul_u32_u24 v{ga+i}, 1280, v{t+2}\nv_lshl_add_u32 v{ga+i}, v{t+3}, 4, v{ga+i}')
            if i == 2: p(f'v_cmp_gt_u32 vcc, 160, v{t}\nv_mov_b32 v{t+1}, 0x7ffffff0\nv_cndmask_b32 v{ga+i}, v{t+1}, v{ga+i}, vcc')
        p(f's_and_b32 {T0}, {sR2}, 1\ns_lshl_b32 {T0}, {T0}, 2\ns_add_u32 {T0}, {T0}, {sW}\ns_lshl_b32 {T0}, {T0}, 8\ns_lshr_b32 {T1}, {sR2}, 1\ns_lshl_b32 {T1}, {T1}, 4\ns_add_u32 {T0}, {T0}, {T1}')
        p(f's_mul_i32 s91, {T0}, 1280\ns_mul_i32 {T0}, {sC2}, 160\ns_add_u32 s91, s91, {T0}\ns_add_u32 {T0}, s91, {WS_Y}')
        for i in range(3): p(f'buffer_load_dwordx4 {vr(Y+4*i,4)}, v{ga+i}, {sWS}, {T0} offen sc1')
        p(f'v_and_b32 v{t}, 15, v{vL}\nv_mul_u32_u24 v{t}, 336, v{t}\nv_lshrrev_b32 v{u}, 4, v{vL}\nv_lshl_add_u32 v{t}, v{u}, 4, v{t}\ns_mul_i32 {T0}, {sW}, 21504\ns_add_u32 {T0}, {T0}, {L_XS}\nv_add_u32 v{wa}, {T0}, v{t}')
        p.barrier()
        for rg in range(4):
            for tt in range(5): p(f'ds_write_b128 v{wa}, {vr(ACC+4*(5*rg+tt),4)} offset:{rg*16*336 + tt*64}')
        p.barrier()
        R = HF
        for i in range(3):
            for src in range(4):
                o = src * 21504
                if o + 16 > 65535: raise RuntimeError
                p(f'ds_read_b128 {vr(R+8*src,4)}, v{ra+i} offset:{o}\nds_read_b128 {vr(R+8*src+4,4)}, v{ra+i} offset:{o+16}')
            for e in range(0, 8, 2):
                p(f'v_pk_add_f32 {vr(R+e,2)}, {vr(R+e,2)}, {vr(R+8+e,2)}\nv_pk_add_f32 {vr(R+16+e,2)}, {vr(R+16+e,2)}, {vr(R+24+e,2)}\nv_pk_add_f32 {vr(R+e,2)}, {vr(R+e,2)}, {vr(R+16+e,2)}')
                y = Y + 4 * i + e // 2
                p(f'v_lshlrev_b32 v{t}, 16, v{y}\nv_and_b32 v{t+1}, 0xffff0000, v{y}\nv_pk_add_f32 {vr(R+e,2)}, {vr(R+e,2)}, {vr(t,2)}\nv_cvt_pk_bf16_f32 v{y}, v{R+e}, v{R+e+1}')
            p(f'buffer_store_dwordx4 {vr(Y+4*i,4)}, v{ga+i}, {sOUT}, s91 offen')
        self.stamp(p, 'end')
        return p

    def build(self):
        P = Prog()
        P.ext(self.prologue())
        self.stamp(P, 'start')
        P.ext(self.stage1())
        P.ext(self.packs())
        P.ext(self.g1_setup())
        P.ext(self.g1a())
        P.ext(self.stage2())
        P.ext(self.g1b())
        P.ext(self.stage3())
        P.ext(self.g2())
        P('s_waitcnt vmcnt(0)\nL_end:\ns_endpgm')
        rep = {}
        body = finalize(P.L, rep)
        hdr = open('parallel_sum__spectral_gfnet__glu_gated_swiglu__prompt.s.ref').read().split('\n')
        out = [l for l in hdr if l.startswith(';') and '@launch' not in l and 'Override launch' not in l and 'grid=ceil' not in l]
        out.append(f'; @launch grid=(256,1,1) block=(256,1,1) lds={LDS_BYTES}')
        out += ['.amdgcn_target "amdgcn-amd-amdhsa--gfx950"', '.text', f'.globl {KNAME}', '.p2align 8', f'.type {KNAME},@function', f'{KNAME}:']
        out += [('' if l.endswith(':') else '    ') + l for l in body]
        out += ['.p2align 8', '.type tab_data,@object', 'tab_data:']
        T = self.TAB
        for i in range(0, len(T), 8): out.append('.long ' + ','.join(hex(int(v)) for v in T[i:i + 8]))
        out += [f'.size tab_data, {len(T)*4}', '.section .rodata,"a"', '.p2align 6', f'.amdhsa_kernel {KNAME}',
                '  .amdhsa_next_free_vgpr 512', '  .amdhsa_next_free_sgpr 102', '  .amdhsa_accum_offset 256', '  .amdhsa_group_segment_fixed_size 0',
                '  .amdhsa_kernarg_size 80', '  .amdhsa_user_sgpr_count 2', '  .amdhsa_user_sgpr_kernarg_segment_ptr 1', '  .amdhsa_system_sgpr_workgroup_id_x 1',
                '.end_amdhsa_kernel']
        rep['vhi'] = self.V.hi
        return '\n'.join(out) + '\n', rep

if __name__ == '__main__':
    stamps = '--stamps' in sys.argv
    g = Gen(stamps=stamps)
    s, rep = g.build()
    path = sys.argv[1]
    open(path, 'w').write(s)
    if stamps: open(path + '.names', 'w').write('\n'.join(g.stamp_names))
    print(rep, len(s))
```

```python
import sys, math
import numpy as np
from asmlib import *
import tables

KNAME = "parallel_sum__spectral_gfnet__glu_gated_swiglu__prompt_kernel"
WS_GEN = 0; WS_STATS = 0x1000; WS_W2F = 0x10000; WS_HF = 0x11000; WS_YF = 0x16000
MB = 1 << 20
WS_V = 1 * MB; WS_WP = 5 * MB; WS_VP = 9 * MB; WS_H = 13 * MB; WS_Y = 20 * MB; WS_W2P = 23 * MB; WS_STAMP = 128 * MB
WS_SIZE = 268435456
L_T23 = 0; L_C1 = 12288; L_C2 = 32768; L_C3 = 43008; L_C4 = 55296; L_XS = 65536; L_RING = 114688
L_CS = L_C4
LDS_BYTES = 163840
sX, sWR, sWI, sW1, sW3, sW2, sOUT, sWS, sTAB = ('s[%d:%d]' % (4 * i, 4 * i + 3) for i in range(1, 10))
sW, sXCD, sJ, sR, sC, sS2, sR2, sC2, sN = ('s%d' % i for i in range(40, 49))
sOFFA, sOFFB, sXB, sW1B, sREC, sXROW = ('s%d' % i for i in range(49, 55))
T0, T1, T2, T3, T4, T5 = ('s%d' % i for i in range(56, 62))
sSAVE = 's[62:63]'; sPOLL = 's64'
LOG2E = 1.4426950408889634
def f2u(x): return int(np.float32(x).view(np.uint32))
def hx(x): return hex(x & 0xffffffff)

class Gen:
    def __init__(self, stamps=False, opts=None):
        self.V = Regs(256, first=1)
        self.stamps = stamps; self.opts = opts or {}
        self.TAB, self.tn, self.n1 = tables.build()
        self.slow = []; self.nlab = 0; self.nstamp = 0
    def lab(self, s):
        self.nlab += 1; return f'L_{s}_{self.nlab}'
    def stamp(self, p, name=''):
        if self.opts.get('probe') == name:
            p('s_memrealtime s[96:97]\ns_waitcnt lgkmcnt(0)')
        if not self.stamps: return
        i = self.nstamp; self.nstamp += 1
        self.stamp_names = getattr(self, 'stamp_names', []) + [name]
        a, b = self.vST, self.vST + 1
        p(f's_memrealtime s[66:67]\ns_memtime s[68:69]\ns_waitcnt lgkmcnt(0)')
        p(f'v_mov_b32 v{a}, s66\nv_mov_b32 v{b}, s68\ns_mov_b64 {sSAVE}, exec\ns_mov_b64 exec, 1')
        p(f'buffer_store_dwordx2 v[{a}:{b}], v{self.vZERO}, {sWS}, s70 offen offset:{8*i}\ns_mov_b64 exec, {sSAVE}')
    def poll(self, p, load, check, name):
        l0 = self.lab(name); l1 = self.lab(name + 'd')
        p.wait_vm(); p.wait_ds()
        p(f's_mov_b32 {sPOLL}, 0\n{l0}:')
        load(p); p.wait_vm(); check(p)
        p(f's_cbranch_vccz {l1}\ns_sleep 2\ns_add_u32 {sPOLL}, {sPOLL}, 1\ns_cmp_lt_u32 {sPOLL}, 0x40000\ns_cbranch_scc1 {l0}\n{l1}:')

    def prologue(self):
        p = Prog(); V = self.V
        p('s_cmp_ge_u32 s2, 256\ns_cbranch_scc1 L_end')
        if self.opts.get('probe'): p('s_memrealtime s[94:95]')
        p('s_load_dwordx4 s[72:75], s[0:1], 0\ns_load_dwordx2 s[76:77], s[0:1], 16\ns_load_dwordx4 s[80:83], s[0:1], 32')
        p('s_load_dwordx4 s[84:87], s[0:1], 48\ns_load_dwordx2 s[88:89], s[0:1], 72')
        self.vL = V.get(); self.vZERO = V.get()
        vL = self.vL
        p(f'v_and_b32 v{vL}, 63, v0\nv_lshrrev_b32 v{self.vZERO}, 6, v0')
        p(f'v_readfirstlane_b32 {sW}, v{self.vZERO}\nv_mov_b32 v{self.vZERO}, 0')
        p(f's_and_b32 {sXCD}, s2, 7\ns_lshr_b32 {sJ}, s2, 3')
        p(f's_and_b32 {T0}, {sXCD}, 1\ns_lshr_b32 {T1}, {sXCD}, 1\ns_and_b32 {T2}, {sJ}, 7\ns_lshr_b32 {T3}, {sJ}, 3')
        p(f's_lshl_b32 {sR}, {T0}, 3\ns_add_u32 {sR}, {sR}, {T2}\ns_lshl_b32 {sC}, {T1}, 2\ns_add_u32 {sC}, {sC}, {T3}')
        p(f's_lshl_b32 {sR2}, {T1}, 3\ns_add_u32 {sR2}, {sR2}, {T2}\ns_lshl_b32 {sC2}, {T0}, 2\ns_add_u32 {sC2}, {sC2}, {T3}')
        p(f's_lshl_b32 {sS2}, {T0}, 7\ns_lshl_b32 {T1}, {T1}, 5\ns_add_u32 {sS2}, {sS2}, {T1}\ns_add_u32 {sS2}, {sS2}, {sJ}')
        p(f's_lshl_b32 {sREC}, {sXCD}, 5\ns_add_u32 {sREC}, {sREC}, {sJ}')
        p(f's_and_b32 {T0}, {sC}, 1\ns_lshl_b32 {T0}, {T0}, 6\ns_mul_i32 {T1}, {sC}, 192\ns_add_u32 {sOFFA}, {T1}, {T0}')
        p(f's_lshl_b32 {T0}, {T0}, 1\ns_add_u32 {sOFFB}, {T1}, 128\ns_sub_u32 {sOFFB}, {sOFFB}, {T0}')
        p(f's_lshl_b32 {T0}, {sW}, 8\ns_add_u32 {T0}, {T0}, {sS2}\ns_mul_i32 {sXROW}, {T0}, 1280')
        p('s_getpc_b64 s[36:37]\nL_pc:\ns_add_u32 s36, s36, tab_data-L_pc\ns_addc_u32 s37, s37, 0')
        p(f's_mov_b32 s38, {len(self.TAB)*4}\ns_mov_b32 s39, 0x20000')
        p('s_waitcnt lgkmcnt(0)')
        p('s_load_dword s48, s[88:89], 0')
        srd = [(4, 72, 2621440), (8, 74, None), (12, 76, None), (16, 80, 1966080), (20, 82, 1966080), (24, 84, 1966080), (28, 86, 2621440), (32, 88, WS_SIZE)]
        for d, s, n in srd:
            p(f's_mov_b32 s{d}, s{s}\ns_mov_b32 s{d+1}, s{s+1}')
            if n: p(f's_mov_b32 s{d+2}, {n}')
            else: p(f's_add_u32 {T0}, s2, 1\ns_mul_i32 s{d+2}, {T0}, 5136')
            p(f's_mov_b32 s{d+3}, 0x20000')
        if self.stamps:
            self.vST = V.get(2)
            p(f's_lshl_b32 s70, s2, 10\ns_lshl_b32 {T0}, {sW}, 8\ns_add_u32 s70, s70, {T0}\ns_add_u32 s70, s70, {WS_STAMP}')
        p('s_waitcnt lgkmcnt(0)')
        p(f's_mul_i32 {sN}, {sN}, 1664525\ns_add_u32 {sN}, {sN}, 1013904223')
        self.vL16 = V.get(); self.vT16 = V.get(); self.vREC = V.get(); self.vSWZ = V.get()
        t = V.get(); u = V.get()
        p(f'v_lshlrev_b32 v{self.vL16}, 4, v{vL}\nv_lshlrev_b32 v{self.vT16}, 4, v0')
        p(f'v_lshrrev_b32 v{t}, 2, v0\nv_and_b32 v{u}, 3, v0\nv_lshlrev_b32 v{self.vREC}, 14, v{t}\nv_lshl_add_u32 v{self.vREC}, v{u}, 4, v{self.vREC}')
        p(f'v_bfe_u32 v{self.vSWZ}, v0, 4, 2\nv_xor_b32 v{self.vSWZ}, v{self.vSWZ}, v{u}\nv_lshlrev_b32 v{self.vSWZ}, 4, v{self.vSWZ}\nv_lshl_add_u32 v{self.vSWZ}, v{t}, 6, v{self.vSWZ}')
        V.put(t); V.put(u)
        return p

    def dma(self, p, voff, srd, soff, ldsaddr, aux=''):
        if isinstance(ldsaddr, tuple): p(f's_add_u32 m0, {ldsaddr[0]}, {ldsaddr[1]}')
        else: p(f's_mov_b32 m0, {ldsaddr}')
        return p.t(f'buffer_load_dwordx4 v{voff}, {srd}, {soff} offen {aux} lds'.replace('  ', ' '))

    def tab_dma(self, p, first, n, lds):
        toks = []
        p(f's_lshl_b32 {T0}, {sW}, 10')
        for i in range(0, n, 4):
            p(f's_add_u32 {T1}, {T0}, {(first + i) * 1024}')
            toks.append(self.dma(p, self.vL16, sTAB, T1, (T0, lds + i * 1024)))
        return toks

    def kidx(self, p, it, kk):
        p(f's_lshl_b32 {T0}, {sW}, 5\ns_add_u32 {T0}, {T0}, {128*it}\nv_and_b32 v{kk}, 31, v{self.vL}\nv_add_u32 v{kk}, {T0}, v{kk}\nv_min_u32 v{kk}, 320, v{kk}')
    def recoff(self, p, kk, dst):
        V = self.V; a = V.get(); b = V.get()
        p(f'v_mul_u32_u24 v{a}, 6554, v{kk}\nv_lshrrev_b32 v{a}, 16, v{a}\nv_min_u32 v{a}, 31, v{a}')
        p(f'v_mul_u32_u24 v{b}, 10, v{a}\nv_sub_u32 v{b}, v{kk}, v{b}\nv_lshlrev_b32 v{dst}, 6, v{a}')
        p(f'v_mul_u32_u24 v{a}, 21846, v{b}\nv_lshrrev_b32 v{a}, 16, v{a}')
        p(f'v_add_u32 v{b}, v{b}, v{a}\nv_lshl_add_u32 v{dst}, v{b}, 2, v{dst}')
        V.put(a); V.put(b)

    def phase_matrix(self, p, dst, inverse):
        V = self.V; vL = self.vL
        h = V.get(); j = V.get(); hp = V.get(); i = V.get(); ph = V.get(8); t = V.get(); u = V.get(); sg = V.get()
        p(f'v_lshrrev_b32 v{h}, 5, v{vL}\nv_bfe_u32 v{j}, v{vL}, 3, 1\nv_bfe_u32 v{hp}, v{vL}, 2, 1\nv_and_b32 v{i}, 3, v{vL}')
        if not inverse:
            f1 = j
            p(f'v_lshlrev_b32 v{j}, 2, v{j}\nv_lshl_add_u32 v{j}, v{hp}, 1, v{j}\nv_lshrrev_b32 v{t}, 1, v{i}\nv_add_u32 v{f1}, v{j}, v{t}')
            p(f'v_lshlrev_b32 v{sg}, 9, v{t}\nv_sub_u32 v{sg}, 256, v{sg}')
            p(f'v_and_b32 v{i}, 1, v{i}\nv_lshlrev_b32 v{i}, 9, v{i}')
            for d in range(2):
                p(f'v_lshlrev_b32 v{t}, 9, v{h}\nv_add_u32 v{t}, {256*d}, v{t}\nv_add_u32 v{t}, {sS2}, v{t}\nv_mul_u32_u24 v{t}, v{t}, v{f1}')
                p(f'v_sub_u32 v{t}, 0, v{t}')
                p(f'v_sub_u32 v{u}, v{t}, v{sg}\nv_sub_u32 v{ph+2*d}, v{u}, v{i}\nv_add_u32 v{ph+2*d+1}, 512, v{ph+2*d}')
                p(f'v_add_u32 v{u}, v{t}, v{sg}\nv_sub_u32 v{ph+4+2*d}, v{u}, v{i}\nv_subrev_u32 v{ph+4+2*d+1}, 512, v{ph+4+2*d}')
            K = 1 / math.sqrt(2)
        else:
            pp = j
            p(f'v_lshl_add_u32 v{pp}, v{j}, 1, v{hp}\nv_lshlrev_b32 v{pp}, 8, v{pp}\nv_add_u32 v{pp}, {sS2}, v{pp}')
            p(f'v_lshrrev_b32 v{t}, 1, v{i}\nv_lshlrev_b32 v{t}, 1, v{t}\nv_sub_u32 v{sg}, 1, v{t}')
            p(f'v_mul_i32_i24 v{pp}, v{pp}, v{sg}\nv_lshlrev_b32 v{sg}, 9, v{sg}')
            p(f'v_and_b32 v{i}, 1, v{i}\nv_lshlrev_b32 v{i}, 9, v{i}\nv_lshlrev_b32 v{h}, 2, v{h}')
            for ii in range(4):
                p(f'v_add_u32 v{t}, {ii}, v{h}\nv_mul_i32_i24 v{t}, v{t}, v{pp}')
                p(f'v_add_u32 v{t}, {hx(256 if ii % 2 == 0 else -256)}, v{t}\nv_sub_u32 v{ph+2*ii}, v{t}, v{i}\nv_add_u32 v{ph+2*ii+1}, v{ph+2*ii}, v{sg}')
            K = math.sqrt(2) / (2048 * 640)
        for e in range(8):
            p(f'v_and_b32 v{ph+e}, 2047, v{ph+e}\nv_cvt_f32_u32 v{ph+e}, v{ph+e}\nv_mul_f32 v{ph+e}, {hx(f2u(1/2048))}, v{ph+e}')
        for e in range(8): p(f'v_cos_f32 v{ph+e}, v{ph+e}')
        for e in range(8): p(f'v_mul_f32 v{ph+e}, {hx(f2u(K))}, v{ph+e}')
        for d in range(4): p(f'v_cvt_pk_bf16_f32 v{dst+d}, v{ph+2*d}, v{ph+2*d+1}')
        for x in (h, j, hp, i, t, u, sg): V.put(x)
        V.put(ph, 8)

    def allsum32(self, p, x, t):
        for n in (8, 4, 2, 1): p(f'v_add_f32_dpp v{x}, v{x}, v{x} row_ror:{n} row_mask:0xf bank_mask:0xf')
        p(f'v_mov_b32 v{t}, v{x}\nv_permlane16_swap_b32 v{x}, v{t}\nv_add_f32 v{x}, v{x}, v{t}')

    def cmul(self, p, re, im, c, s, t, inverse):
        p(f'v_mul_f32 v{t}, v{re}, v{s}\nv_mul_f32 v{re}, v{re}, v{c}')
        if not inverse: p(f'v_fmac_f32 v{re}, v{im}, v{s}\nv_fma_f32 v{im}, v{im}, v{c}, -v{t}')
        else: p(f'v_fma_f32 v{re}, -v{im}, v{s}, v{re}\nv_fma_f32 v{im}, v{im}, v{c}, v{t}')

    def store_records(self, p, lds_from, swz, base_expr):
        V = self.V; q = V.get(16, 4); a = V.get()
        p(f'v_add_u32 v{a}, {lds_from}, v{self.vSWZ if swz else self.vT16}')
        for i in range(4): p(f'ds_read_b128 {vr(q+4*i,4)}, v{a} offset:{4096*i}')
        base_expr(p)
        toks = []
        for i in range(4):
            p(f'v_mov_b32 v{q+4*i+3}, {sN}')
            if i: p(f's_add_u32 {T0}, {T0}, {MB}')
            toks.append(p.t(f'buffer_store_dwordx4 {vr(q+4*i,4)}, v{self.vREC}, {sWS}, {T0} offen sc1'))
        V.put(q, 16); V.put(a)
        return toks

    def load_records(self, p, base_expr, lds_to, swz, name):
        V = self.V; q = V.get(16, 4); a = V.get()
        def load(p):
            base_expr(p)
            for i in range(4):
                if i: p(f's_add_u32 {T0}, {T0}, 4096')
                p(f'buffer_load_dwordx4 {vr(q+4*i,4)}, v{self.vT16}, {sWS}, {T0} offen sc1')
        def check(p):
            p(f'v_xor_b32 v{a}, {sN}, v{q+3}')
            for i in range(1, 4): p(f'v_xor_b32 v{q+4*i+3}, {sN}, v{q+4*i+3}\nv_or_b32 v{a}, v{a}, v{q+4*i+3}')
            p(f'v_cmp_ne_u32 vcc, 0, v{a}')
        self.poll(p, load, check, name)
        p(f'v_add_u32 v{a}, {lds_to}, v{self.vSWZ if swz else self.vT16}')
        for i in range(4): p(f'ds_write_b128 v{a}, {vr(q+4*i,4)} offset:{4096*i}')
        V.put(q, 16); V.put(a)

    def tab_read(self, p, name, lds, first, dst, k='v'):
        p(f'ds_read_b128 {vr(dst,4,k)}, v{self.vL16} offset:{lds + (self.tn[name] - first) * 1024}')

    def stage1(self):
        p = Prog(); V = self.V; vL = self.vL
        XN = L_C2; ZS = L_C3; VS = L_C1
        self.vXR = XR = V.get(10); self.vROW = V.get(); self.vNAT = V.get()
        t = V.get(); u = V.get()
        p(f'v_lshrrev_b32 v{t}, 5, v{vL}\nv_and_b32 v{u}, 31, v{vL}\nv_lshlrev_b32 v{u}, 3, v{u}')
        p(f'v_mul_u32_u24 v{self.vROW}, 1310720, v{t}\nv_add_u32 v{self.vROW}, v{self.vROW}, v{u}')
        for i in range(5): p(f'buffer_load_dwordx2 {vr(XR+2*i,2)}, v{self.vROW}, {sX}, {sXROW} offen offset:{256*i}')
        tk = self.tab_dma(p, 0, 20, L_C1)
        tk2 = self.tab_dma(p, self.n1, 12, L_T23)
        p(f'v_mul_u32_u24 v{t}, 1280, v{t}\ns_mul_i32 {T0}, {sW}, 2560\nv_add3_u32 v{self.vNAT}, v{t}, v{u}, {T0}')
        M = V.get(4, 4); self.phase_matrix(p, M, False)
        self.vKK = V.get(3); self.vRO = V.get(3)
        for it in range(3):
            self.kidx(p, it, self.vKK + it); self.recoff(p, self.vKK + it, self.vRO + it)
        self.stamp(p, 'I.setup')
        c = V.get(20); sm = V.get(); vr_ = V.get();
        for i in range(10): p(f'v_lshlrev_b32 v{c+2*i}, 16, v{XR+i}\nv_and_b32 v{c+2*i+1}, 0xffff0000, v{XR+i}')
        a2 = V.get(2)
        p(f'v_pk_add_f32 {vr(a2,2)}, {vr(c,2)}, {vr(c+2,2)}')
        for i in range(2, 10): p(f'v_pk_add_f32 {vr(a2,2)}, {vr(a2,2)}, {vr(c+2*i,2)}')
        p(f'v_add_f32 v{sm}, v{a2}, v{a2+1}')
        self.allsum32(p, sm, t)
        p(f'v_mul_f32 v{sm}, {hx(f2u(1/640))}, v{sm}')
        for i in range(20): p(f'v_sub_f32 v{c+i}, v{c+i}, v{sm}')
        p(f'v_pk_mul_f32 {vr(a2,2)}, {vr(c,2)}, {vr(c,2)}')
        for i in range(1, 10): p(f'v_pk_fma_f32 {vr(a2,2)}, {vr(c+2*i,2)}, {vr(c+2*i,2)}, {vr(a2,2)}')
        p(f'v_add_f32 v{vr_}, v{a2}, v{a2+1}')
        self.allsum32(p, vr_, t)
        p(f'v_mov_b32 v{t}, {hx(f2u(1e-5))}\nv_fmac_f32 v{t}, {hx(f2u(1/640))}, v{vr_}\nv_rsq_f32 v{u}, v{t}')
        st = V.get(4, 4); sa = V.get()
        p(f'v_mov_b32 v{st}, v{sm}\nv_mov_b32 v{st+1}, v{t}\nv_mov_b32 v{st+2}, {sN}\nv_mov_b32 v{st+3}, {sN}')
        p(f'v_lshrrev_b32 v{sa}, 5, v{vL}\nv_lshlrev_b32 v{sa}, 6, v{sa}')
        p(f's_lshl_b32 {T0}, {sS2}, 7\ns_lshl_b32 {T1}, {sW}, 4\ns_add_u32 {T0}, {T0}, {T1}\ns_add_u32 {T0}, {T0}, {WS_STATS}')
        p(f's_mov_b32 exec_lo, 1\ns_mov_b32 exec_hi, 1\nbuffer_store_dwordx4 {vr(st,4)}, v{sa}, {sWS}, {T0} offen sc1\ns_mov_b64 exec, -1')
        for i in range(20): p(f'v_mul_f32 v{c+i}, v{c+i}, v{u}')
        for i in range(10): p(f'v_cvt_pk_bf16_f32 v{c+i}, v{c+2*i}, v{c+2*i+1}')
        for i in range(5): p(f'ds_write_b64 v{self.vNAT}, {vr(c+2*i,2)} offset:{XN + 256*i}')
        V.put(st, 4); V.put(sa); V.put(a2, 2); V.put(sm); V.put(vr_); V.put(c, 20)
        ta = V.get()
        p(f'v_bfe_u32 v{t}, v{vL}, 2, 2\nv_lshrrev_b32 v{u}, 5, v{vL}\nv_lshl_add_u32 v{t}, v{u}, 2, v{t}\nv_mul_u32_u24 v{ta}, 40, v{t}')
        p(f'v_and_b32 v{t}, 3, v{vL}\nv_lshlrev_b32 v{t}, 3, v{t}\nv_bfe_u32 v{u}, v{vL}, 4, 1\nv_cmp_eq_u32 vcc, 1, v{u}\nv_cndmask_b32 v{t}, v{t}, 32, vcc'.replace(f'v_cndmask_b32 v{t}, v{t}, 32, vcc', f'v_cndmask_b32_e64 v{t}, v{t}, 32, vcc'))
        p(f's_mul_i32 {T0}, {sW}, 2560\nv_add3_u32 v{ta}, v{ta}, v{t}, {T0}')
        A = V.get(16, 4)
        for comp in range(2):
            for tt in range(2):
                for e in range(2): p(f'ds_read_b64_tr_b16 {vr(A+8*comp+4*tt+2*e,2)}, v{ta} offset:{XN + comp*1280 + tt*640 + e*320}')
        V.put(ta)
        p.wait(tk); p.barrier()
        self.vF32 = F32 = V.get(24, 4); self.vTW = TW = V.get(32, 4); F20 = V.get(20, 4)
        for i, n in enumerate(('C32_0', 'C32_1', 'S32_0', 'S32_1', 'N32_0', 'N32_1')): self.tab_read(p, n, L_C1, 0, F32 + 4 * i)
        for j in range(4): self.tab_read(p, f'TWC_{j}', L_C1, 0, TW + 4 * j); self.tab_read(p, f'TWS_{j}', L_C1, 0, TW + 16 + 4 * j)
        for i, n in enumerate(('C20', 'S20', 'N20', 'MRE', 'MIM')): self.tab_read(p, n, L_C1, 0, F20 + 4 * i)
        DR = V.get(16, 4); DI = V.get(16, 4)
        mf = 'v_mfma_f32_32x32x16_bf16'
        C_, S_, N_ = F32, F32 + 8, F32 + 16
        seq = [(DR, A, C_), (DI, A + 8, C_), (DR, A + 4, C_ + 4), (DI, A + 12, C_ + 4), (DR, A + 8, S_), (DI, A, N_), (DR, A + 12, S_ + 4), (DI, A + 4, N_ + 4)]
        for n, (d, a, b) in enumerate(seq): p(f'{mf} {vr(d,16)}, {vr(a,4)}, {vr(b,4)}, {"0" if n < 2 else vr(d,16)}')
        for r in range(12): self.cmul(p, DR + r, DI + r, TW + r, TW + 16 + r, t, False)
        B = A
        for d in range(4): p(f'v_cvt_pk_bf16_f32 v{B+d}, v{DR+2*d}, v{DR+2*d+1}\nv_cvt_pk_bf16_f32 v{B+4+d}, v{DI+2*d}, v{DI+2*d+1}')
        for d in range(2): p(f'v_cvt_pk_bf16_f32 v{B+8+d}, v{DR+8+2*d}, v{DR+9+2*d}\nv_cvt_pk_bf16_f32 v{B+10+d}, v{DI+8+2*d}, v{DI+9+2*d}')
        seq = [(DR, F20, B), (DI, F20 + 8, B), (DR, F20 + 4, B + 4), (DI, F20, B + 4), (DR, F20 + 12, B + 8), (DI, F20 + 16, B + 8)]
        for n, (d, a, b) in enumerate(seq): p(f'{mf} {vr(d,16)}, {vr(a,4)}, {vr(b,4)}, {"0" if n < 2 else vr(d,16)}')
        za = V.get()
        p(f'v_and_b32 v{t}, 31, v{vL}\nv_lshrrev_b32 v{u}, 5, v{vL}\nv_lshl_add_u32 v{t}, v{u}, 7, v{t}\nv_lshlrev_b32 v{t}, 2, v{t}\ns_mul_i32 {T0}, {sW}, 3072\nv_add_u32 v{za}, {T0}, v{t}')
        self.vZA = za
        for r in range(12): p(f'v_cvt_pk_bf16_f32 v{A+r}, v{DR+r}, v{DI+r}')
        for r in range(12): p(f'ds_write_b32 v{za}, v{A+r} offset:{ZS + (8*(r>>2) + (r&3))*128}')
        V.put(F20, 20)
        aF = V.get(3); aM = V.get(3); aV = V.get(3)
        p(f'v_lshrrev_b32 v{u}, 5, v{vL}\nv_mul_u32_u24 v{u}, 6144, v{u}\nv_add_u32 v{u}, {ZS}, v{u}')
        for it in range(3):
            kk = self.vKK + it
            p(f'v_lshl_add_u32 v{aF+it}, v{kk}, 2, v{u}\nv_sub_u32 v{t}, 640, v{kk}\nv_cmp_eq_u32 vcc, 0, v{kk}\nv_cndmask_b32_e64 v{t}, v{t}, 0, vcc\nv_lshl_add_u32 v{aM+it}, v{t}, 2, v{u}')
        p(f'v_lshrrev_b32 v{u}, 5, v{vL}\nv_lshlrev_b32 v{u}, 12, v{u}\nv_add_u32 v{u}, {VS}, v{u}')
        for it in range(3): p(f'v_add_u32 v{aV+it}, v{self.vRO+it}, v{u}')
        p.barrier()
        D3 = [DR, DI, V.get(16, 4)]
        for it in range(3):
            p(f'ds_read2st64_b32 {vr(A+4*it,2)}, v{aF+it} offset0:0 offset1:12\nds_read2st64_b32 {vr(A+4*it+2,2)}, v{aM+it} offset0:0 offset1:12')
        for it in range(3): p(f'{mf} {vr(D3[it],16)}, {vr(M,4)}, {vr(A+4*it,4)}, 0')
        for it in range(3):
            for d in range(4): p(f'v_cvt_pk_bf16_f32 v{D3[it]+8+d}, v{D3[it]+2*d}, v{D3[it]+2*d+1}')
            for d in range(4): p(f'ds_write_b32 v{aV+it}, v{D3[it]+8+d} offset:{(d&1)*2048 + (d>>1)*8192}')
        V.put(D3[2], 16); V.put(DR, 16); V.put(DI, 16); V.put(A, 16); V.put(aF, 3); V.put(aM, 3); V.put(aV, 3); V.put(M, 4)
        p.barrier()
        self.store_records(p, VS, False, lambda p: p(f's_lshl_b32 {T0}, {sS2}, 6\ns_add_u32 {T0}, {T0}, {WS_V}'))
        V.put(t); V.put(u)
        p.wait(tk2)
        self.stamp(p, 'I.done')
        return p

    def packs(self):
        p = Prog(); V = self.V; vL = self.vL
        WL = L_C2; W2L = L_XS
        p.barrier()
        tk = []
        p(f's_mul_i32 {T2}, s2, 5136\ns_lshl_b32 {T0}, {sW}, 10\ns_add_u32 {T1}, {T2}, {T0}')
        for a, srd in enumerate((sWR, sWI)):
            tk.append(self.dma(p, self.vL16, srd, T1, (T0, WL + a * 8192)))
        p(f's_add_u32 {T1}, {T1}, 4096')
        for a, srd in enumerate((sWR, sWI)):
            tk.append(self.dma(p, self.vL16, srd, T1, (T0, WL + a * 8192 + 4096)))
        t = V.get(); u = V.get(); a2 = V.get()
        p(f's_min_u32 {T2}, s2, 239\ns_mul_i32 {T3}, {T2}, 52429\ns_lshr_b32 {T3}, {T3}, 18\ns_mul_i32 {T4}, {T3}, 5\ns_sub_u32 {T4}, {T2}, {T4}')
        p(f'v_lshrrev_b32 v{t}, 4, v{vL}\nv_mul_u32_u24 v{t}, 1280, v{t}\nv_and_b32 v{u}, 15, v{vL}\nv_lshl_add_u32 v{a2}, v{u}, 4, v{t}')
        p(f's_lshl_b32 {T0}, {T3}, 2\ns_add_u32 {T0}, {T0}, {sW}\ns_mul_i32 {T0}, {T0}, 10240\ns_lshl_b32 {T1}, {T4}, 8\ns_add_u32 {T0}, {T0}, {T1}\ns_lshl_b32 {T1}, {sW}, 11')
        tk.append(self.dma(p, a2, sW2, T0, (T1, W2L)))
        p(f's_add_u32 {T0}, {T0}, 5120')
        tk.append(self.dma(p, a2, sW2, T0, (T1, W2L + 1024)))
        p(f'v_and_b32 v{t}, 3, v0\nv_mul_u32_u24 v{t}, 6, v{t}\nv_bfe_u32 v{u}, v0, 2, 5\nv_mul_u32_u24 v{u}, 20, v{u}\nv_add_u32 v{t}, v{t}, v{u}')
        p(f'v_lshrrev_b32 v{u}, 7, v0\nv_mul_u32_u24 v{u}, 642, v{u}\nv_add_u32 v{t}, v{t}, v{u}')
        p(f'v_lshrrev_b32 v{u}, 5, v{vL}\nv_lshlrev_b32 v{a2}, 12, v{u}\nv_bfe_u32 v{u}, v{vL}, 2, 3\nv_lshl_add_u32 v{a2}, v{u}, 8, v{a2}')
        p(f'v_and_b32 v{u}, 3, v{vL}\nv_lshl_add_u32 v{a2}, v{u}, 3, v{a2}\ns_lshl_b32 {T0}, {sW}, 6\ns_add_u32 {T0}, {T0}, {W2L}\nv_add_u32 v{a2}, {T0}, v{a2}')
        p.wait(tk); p.barrier()
        q = V.get(16, 4); f = V.get(8, 4); q2 = V.get(12)
        for fi in range(2):
            for e in range(2): p(f'ds_read_b64_tr_b16 {vr(f+4*fi+2*e,2)}, v{a2} offset:{e*2048 + fi*32}')
        for i in range(4):
            for jj in range(3):
                p(f'ds_read_u16 v{q+4*i+jj}, v{t} offset:{WL + i*1284 + 2*jj}\nds_read_u16 v{q2+3*i+jj}, v{t} offset:{WL + 8192 + i*1284 + 2*jj}')
        p(f's_mul_i32 {T0}, {T3}, 40\ns_lshl_b32 {T1}, {T4}, 3\ns_add_u32 {T0}, {T0}, {T1}\ns_lshl_b32 {T1}, {sW}, 1\ns_add_u32 {T0}, {T0}, {T1}\ns_lshl_b32 {T0}, {T0}, 10\ns_add_u32 {T0}, {T0}, {WS_W2P}')
        st = [p.t(f'buffer_store_dwordx4 {vr(f+4*fi,4)}, v{self.vL16}, {sWS}, {T0} offen offset:{1024*fi} sc1') for fi in range(2)]
        p(f's_lshl_b32 {T0}, s2, 6\ns_add_u32 {T0}, {T0}, {WS_WP}')
        for i in range(4):
            for jj in range(3): p(f'v_lshl_or_b32 v{q+4*i+jj}, v{q2+3*i+jj}, 16, v{q+4*i+jj}')
            p(f'v_mov_b32 v{q+4*i+3}, {sN}')
            if i: p(f's_add_u32 {T0}, {T0}, {MB}')
            p(f'buffer_store_dwordx4 {vr(q+4*i,4)}, v{self.vREC}, {sWS}, {T0} offen sc1')
        V.put(q2, 12)
        p.wait(st); p.barrier()
        self.flag(p, lambda p: p(f's_lshl_b32 {T0}, s2, 2\ns_add_u32 {T0}, {T0}, {WS_W2F}'), wave0=True)
        V.put(q, 16); V.put(f, 8); V.put(t); V.put(u); V.put(a2)
        self.stamp(p, 'packs')
        return p

    def flag(self, p, addr, wave0=False):
        V = self.V; t = V.get()
        addr(p)
        if wave0: p(f's_cmp_eq_u32 {sW}, 0\ns_cselect_b32 {T0}, {T0}, {hx(0xfffffff0)}')
        p(f'v_mov_b32 v{t}, {sN}\ns_mov_b64 exec, 1\nbuffer_store_dword v{t}, v{self.vZERO}, {sWS}, {T0} offen sc1\ns_mov_b64 exec, -1')
        V.put(t)

    def g1_setup(self):
        p = Prog(); V = self.V; vL = self.vL
        self.vXD = V.get(2); self.vWDA = V.get(); self.vWDB = V.get(); self.vXA = V.get(4); self.vWA = V.get(8); self.vWB = V.get(4); self.vSEL = V.get(4, 4)
        t = V.get(); u = V.get(); x = V.get(); y = V.get()
        p(f'v_lshrrev_b32 v{t}, 3, v{vL}\nv_mul_u32_u24 v{x}, 1280, v{t}\nv_and_b32 v{u}, 7, v{vL}\nv_lshrrev_b32 v{y}, 4, v{vL}\nv_xor_b32 v{y}, v{y}, v{u}')
        p(f'v_lshl_add_u32 v{self.vXD}, v{y}, 4, v{x}\nv_xor_b32 v{y}, 4, v{y}\nv_lshl_add_u32 v{self.vXD+1}, v{y}, 4, v{x}')
        p(f'v_mul_u32_u24 v{x}, 3072, v{t}\nv_bfe_u32 v{y}, v{vL}, 4, 1\nv_lshlrev_b32 v{y}, 2, v{y}\nv_xor_b32 v{y}, v{y}, v{u}\nv_lshl_add_u32 v{self.vWDA}, v{y}, 4, v{x}')
        p(f'v_lshrrev_b32 v{t}, 2, v{vL}\nv_mul_u32_u24 v{x}, 3072, v{t}\nv_and_b32 v{u}, 3, v{vL}\nv_lshl_add_u32 v{self.vWDB}, v{u}, 4, v{x}')
        p(f'v_and_b32 v{t}, 31, v{vL}\nv_lshlrev_b32 v{x}, 7, v{t}\ns_mul_i32 {sXB}, {sW}, 12288\ns_add_u32 {sXB}, {sXB}, {L_XS}\nv_add_u32 v{x}, {sXB}, v{x}\nv_bfe_u32 v{t}, v{vL}, 1, 3\nv_lshrrev_b32 v{u}, 5, v{vL}\nv_xor_b32 v{t}, v{t}, v{u}')
        for s in range(4):
            p(f's_add_u32 {T0}, {sW}, {s}\ns_and_b32 {T0}, {T0}, 3\ns_lshl_b32 {T0}, {T0}, 1\nv_xor_b32 v{y}, {T0}, v{t}\nv_lshl_add_u32 v{self.vXA+s}, v{y}, 4, v{x}')
        p(f'v_bfe_u32 v{t}, v{vL}, 2, 2\nv_lshl_add_u32 v{t}, v{u}, 3, v{t}\nv_bfe_u32 v{x}, v{vL}, 4, 1\nv_lshlrev_b32 v{x}, 5, v{x}\nv_and_b32 v{y}, 3, v{vL}\nv_lshl_add_u32 v{x}, v{y}, 3, v{x}')
        p(f'v_add_u32 v{x}, {L_RING}, v{x}\nv_lshl_add_u32 v{y}, v{t}, 6, v{x}\nv_lshl_add_u32 v{x}, v{t}, 7, v{x}\nv_bfe_u32 v{t}, v{vL}, 3, 1\nv_lshl_add_u32 v{x}, v{t}, 6, v{x}')
        for s in range(4):
            p(f's_add_u32 {T0}, {sW}, {s}\ns_and_b32 {T0}, {T0}, 3\ns_lshl_b32 {T1}, {T0}, 11\ns_lshl_b32 {T0}, {T0}, 10')
            p(f'v_add_u32 v{self.vWA+2*s}, {T1}, v{x}\nv_xor_b32 v{self.vWA+2*s+1}, 64, v{self.vWA+2*s}\nv_add_u32 v{self.vWB+s}, {T0}, v{y}')
        p(f'v_and_b32 v{t}, 15, v{vL}\nv_bfe_u32 v{u}, v{vL}, 4, 1\nv_mov_b32 v{x}, 0x3f803f80\nv_cmp_eq_u32 vcc, v{t}, v{u}')
        for i in range(4): p(f'v_cndmask_b32 v{self.vSEL+i}, 0, v{x}, vcc')
        p(f's_lshl_b32 {T0}, {sW}, 9\ns_lshl_b32 {T1}, {sR}, 4\ns_add_u32 {T0}, {T0}, {T1}\ns_mul_i32 s71, {T0}, 1280')
        p(f's_mul_i32 {T0}, {sW}, {16*3072}\ns_add_u32 s90, {T0}, {sOFFA}\ns_mul_i32 {T0}, {sW}, {32*3072}\ns_add_u32 s91, {T0}, {sOFFB}\ns_lshl_b32 s92, {sW}, 11')
        for x_ in (t, u, x, y): V.put(x_)
        return p
    def x_dma(self, p, ch):
        tk = []
        for q in range(4):
            p(f's_add_u32 {T5}, s71, {((q>>1)*256 + 8*(q&1))*1280 + ch*128}')
            tk.append(self.dma(p, self.vXD + (q & 1), sX, T5, (sXB, (ch % 3) * 4096 + q * 1024)))
        return tk
    def wa_dma(self, p, ch):
        tk = []
        for mu in range(2):
            for o in range(2):
                p(f's_add_u32 {T5}, s90, {(64*ch + 8*o)*3072}')
                tk.append(self.dma(p, self.vWDA, (sW1, sW3)[mu], T5, ('s92', L_RING + (ch % 3) * 16384 + mu * 8192 + o * 1024)))
        return tk
    def wb_dma(self, p, ch, slot):
        tk = []
        for mu in range(2):
            for o in range(2):
                p(f's_add_u32 {T5}, s91, {(128*ch + 16*o)*3072}')
                tk.append(self.dma(p, self.vWDB, (sW1, sW3)[mu], T5, ('s92', L_RING + slot * 16384 + mu * 8192 + o * 1024)))
        return tk

    def g1a(self):
        p = Prog(); V = self.V
        mf = 'v_mfma_f32_32x32x16_bf16'; m16 = 'v_mfma_f32_16x16x32_bf16'
        self.vACC = V.get(64, 4); self.vCS = V.get(16, 4); FR = V.get(32, 4)
        ACC = self.vACC; CS = self.vCS
        p.barrier()
        tx = {}; tw = {}
        for ch in range(2): tx[ch] = self.x_dma(p, ch); tw[ch] = self.wa_dma(p, ch)
        PF = 3
        seq = [(ch, t, q) for ch in range(10) for t in range(4) for q in range(4)]
        fr = lambda i: FR + 4 * (i % 8)
        def rd(i):
            ch, t, q = seq[i]
            if t == 0 and q == 0:
                p.wait(tx[ch], tw[ch]); p('s_barrier')
                if ch + 2 < 10: pass
            if q == 0: p(f'ds_read_b128 {ar(16*ch+4*t,4)}, v{self.vXA+t} offset:{(ch%3)*4096}')
            for e in range(2): p(f'ds_read_b64_tr_b16 {vr(fr(i)+2*e,2)}, v{self.vWA+2*t+(q&1)} offset:{(ch%3)*16384 + (q>>1)*8192 + e*512}')
        for i in range(PF): rd(i)
        for i, (ch, t, q) in enumerate(seq):
            if i + PF < len(seq): rd(i + PF)
            first = (ch == 0 and t == 0)
            p(f'{mf} {vr(ACC+16*q,16)}, {vr(fr(i),4)}, {ar(16*ch+4*t,4)}, {"0" if first else vr(ACC+16*q,16)}')
            if t == 0: p(f'{m16} {vr(CS+4*q,4)}, {vr(self.vSEL,4)}, {vr(fr(i),4)}, {"0" if ch == 0 else vr(CS+4*q,4)}')
            if t == 0 and q == 3 and ch + 2 < 10:
                tx[ch + 2] = self.x_dma(p, ch + 2); tw[ch + 2] = self.wa_dma(p, ch + 2)
        V.put(FR, 32)
        self.cs_publish(p, range(4), [CS + 4 * q for q in range(4)])
        V.put(CS, 16)
        self.stamp(p, 'G1a')
        return p

    def stats_load(self, p):
        V = self.V; vL = self.vL
        st = V.get(4, 4); a = V.get(); t = V.get()
        p(f'v_and_b32 v{a}, 15, v{vL}\nv_lshlrev_b32 v{a}, 7, v{a}\nv_bfe_u32 v{t}, v{vL}, 4, 1\nv_lshl_add_u32 v{a}, v{t}, 4, v{a}')
        def load(p):
            p(f's_lshl_b32 {T0}, {sR}, 11\ns_lshl_b32 {T1}, {sW}, 5\ns_add_u32 {T0}, {T0}, {T1}\ns_add_u32 {T0}, {T0}, {WS_STATS}')
            p(f'buffer_load_dwordx4 {vr(st,4)}, v{a}, {sWS}, {T0} offen sc1')
        self.poll(p, load, lambda p: p(f'v_cmp_ne_u32 vcc, {sN}, v{st+3}'), 'st')
        self.vBM = BM = V.get(4, 4); self.vIR2 = V.get(); self.vC1 = V.get()
        p(f'v_mov_b32 v{self.vIR2}, v{st+1}\nv_rsq_f32 v{self.vC1}, v{st+1}\nv_mul_f32 v{self.vC1}, {hx(f2u(-LOG2E))}, v{self.vC1}')
        p(f'v_cmp_gt_u32 vcc, 32, v{vL}\nv_sub_f32 v{st}, 0, v{st}\nv_cndmask_b32 v{st}, 0, v{st}, vcc')
        p(f'v_and_b32 v{st+1}, 0xffff0000, v{st}\nv_sub_f32 v{st}, v{st}, v{st+1}\nv_and_b32 v{st+2}, 0xffff0000, v{st}\nv_sub_f32 v{st}, v{st}, v{st+2}')
        p(f's_mov_b32 {T0}, 0x07060302')
        p(f'v_perm_b32 v{BM}, v{st+2}, v{st+1}, {T0}\nv_perm_b32 v{BM+1}, v{st}, v{st+1}, {T0}\nv_perm_b32 v{BM+2}, v{st+1}, v{st+2}, {T0}\nv_mov_b32 v{BM+3}, 0')
        V.put(st, 4); V.put(a); V.put(t)

    def cs_publish(self, p, tiles, regs):
        V = self.V; a = V.get()
        p(f'v_lshlrev_b32 v{a}, 4, v{self.vL}\ns_lshl_b32 {T0}, {sW}, 2\nv_add_u32 v{a}, {T0}, v{a}\nv_add_u32 v{a}, {L_CS}, v{a}\ns_mov_b64 exec, 0xffff')
        for tl, r in zip(tiles, regs): p(f'ds_write2st64_b32 v{a}, v{r}, v{r+1} offset0:{2*tl} offset1:{2*tl+1}')
        p('s_mov_b64 exec, -1')
        V.put(a)
    def correct(self, p, tile, acc):
        V = self.V; q = V.get(4, 4); a = V.get()
        p(f'v_and_b32 v{a}, 31, v{self.vL}\nv_lshlrev_b32 v{a}, 4, v{a}\nds_read_b128 {vr(q,4)}, v{a} offset:{L_CS + 512*tile}')
        p(f'v_add_f32 v{q}, v{q}, v{q+1}\nv_add_f32 v{q+2}, v{q+2}, v{q+3}\nv_add_f32 v{q}, v{q}, v{q+2}')
        p(f'v_and_b32 v{q+3}, 0xffff0000, v{q}\nv_sub_f32 v{q}, v{q}, v{q+3}\nv_and_b32 v{a}, 0xffff0000, v{q}\nv_sub_f32 v{q}, v{q}, v{a}')
        p(f's_mov_b32 {T0}, 0x07060302\nv_perm_b32 v{q+2}, v{q}, v{a}, {T0}\nv_perm_b32 v{q+1}, v{q+3}, v{a}, {T0}\nv_perm_b32 v{q}, v{q+3}, v{q+3}, {T0}\nv_mov_b32 v{q+3}, 0')
        p(f'v_mfma_f32_32x32x16_bf16 {vr(acc,16)}, {vr(q,4)}, {vr(self.vBM,4)}, {vr(acc,16)}')
        V.put(q, 4); V.put(a)
    def swiglu(self, p, g, u, pi):
        V = self.V; t = V.get(4)
        for r0 in range(0, 16, 4):
            for r in range(4): p(f'v_mul_f32 v{t+r}, v{g+r0+r}, v{self.vC1}')
            for r in range(4): p(f'v_exp_f32 v{t+r}, v{t+r}')
            for r in range(4): p(f'v_mul_f32 v{g+r0+r}, v{g+r0+r}, v{u+r0+r}')
            for r in range(4): p(f'v_fma_f32 v{t+r}, v{t+r}, v{self.vIR2}, v{self.vIR2}')
            for r in range(4): p(f'v_rcp_f32 v{t+r}, v{t+r}')
            for r in range(4): p(f'v_mul_f32 v{g+r0+r}, v{g+r0+r}, v{t+r}')
            for d in range(2): p(f'v_cvt_pk_bf16_f32 v{u+r0//2+d}, v{g+r0+2*d}, v{g+r0+2*d+1}')
        p(f's_and_b32 {T1}, {sC}, 1\ns_add_u32 {T1}, {T1}, {pi}\ns_cmp_eq_u32 {T1}, 3\ns_cselect_b32 {T1}, 0, {T1}\ns_mul_i32 {T0}, {sC}, 3\ns_add_u32 {T0}, {T0}, {T1}')
        p(f's_lshl_b32 {T1}, {sR}, 3\ns_lshl_b32 {T2}, {sW}, 1\ns_add_u32 {T1}, {T1}, {T2}\ns_mul_i32 {T1}, {T1}, 48\ns_add_u32 {T0}, {T0}, {T1}\ns_lshl_b32 {T0}, {T0}, 10\ns_add_u32 {T0}, {T0}, {WS_H}')
        tk = [p.t(f'buffer_store_dwordx4 {vr(u+4*ab,4)}, v{self.vHA}, {sWS}, {T0} offen offset:{512*ab} sc1') for ab in range(2)]
        V.put(t, 4)
        return tk
    def hflag(self, p, pi):
        def addr(p):
            p(f's_lshl_b32 {T0}, {sR}, 1\ns_lshr_b32 {T1}, {sW}, 1\ns_add_u32 {T0}, {T0}, {T1}\ns_lshl_b32 {T0}, {T0}, 2\ns_lshr_b32 {T1}, {sC}, 2\ns_add_u32 {T0}, {T0}, {T1}\ns_lshl_b32 {T0}, {T0}, 7')
            p(f's_and_b32 {T1}, {sC}, 3\ns_mul_i32 {T1}, {T1}, 24\ns_add_u32 {T0}, {T0}, {T1}\ns_and_b32 {T1}, {sW}, 1\ns_lshl_b32 {T1}, {T1}, 2\ns_add_u32 {T0}, {T0}, {T1}\ns_add_u32 {T0}, {T0}, {WS_HF + 8*pi}')
        self.flag(p, addr)

    def g1b(self):
        p = Prog(); V = self.V; vL = self.vL
        mf = 'v_mfma_f32_32x32x16_bf16'; m16 = 'v_mfma_f32_16x16x32_bf16'
        ACC = self.vACC; CS = V.get(8, 4)
        self.vHA = V.get(); t = V.get()
        p(f'v_bfe_u32 v{t}, v{vL}, 4, 1\nv_mul_u32_u24 v{self.vHA}, 49152, v{t}\nv_lshrrev_b32 v{t}, 5, v{vL}\nv_lshl_add_u32 v{self.vHA}, v{t}, 8, v{self.vHA}\nv_and_b32 v{t}, 15, v{vL}\nv_lshl_add_u32 v{self.vHA}, v{t}, 4, v{self.vHA}')
        V.put(t)
        p.barrier()
        tw = {ch: self.wb_dma(p, ch, ch) for ch in range(3)}
        self.stats_load(p)
        for q in range(4): self.correct(p, q, ACC + 16 * q)
        for pr in range(2):
            tk = self.swiglu(p, ACC + 16 * pr, ACC + 32 + 16 * pr, pr)
            p.wait(tk); self.hflag(p, pr)
        self.stamp(p, 'epi_a')
        FR = V.get(32, 4); PF = 3
        seq = [(ch, u, mu) for ch in range(5) for u in range(8) for mu in range(2)]
        fr = lambda i: FR + 4 * (i % 8)
        def rd(i):
            ch, u, mu = seq[i]
            if u == 0 and mu == 0: p.wait(tw[ch]); p('s_barrier')
            for e in range(2): p(f'ds_read_b64_tr_b16 {vr(fr(i)+2*e,2)}, v{self.vWB+(u&3)} offset:{(ch%3)*16384 + mu*8192 + (u>>2)*4096 + e*256}')
        for i in range(PF): rd(i)
        for i, (ch, u, mu) in enumerate(seq):
            if i + PF < len(seq): rd(i + PF)
            first = (ch == 0 and u == 0)
            p(f'{mf} {vr(ACC+16*mu,16)}, {vr(fr(i),4)}, {ar(32*ch+4*u,4)}, {"0" if first else vr(ACC+16*mu,16)}')
            if (u & 3) == 0: p(f'{m16} {vr(CS+4*mu,4)}, {vr(self.vSEL,4)}, {vr(fr(i),4)}, {"0" if first else vr(CS+4*mu,4)}')
            if u == 1 and mu == 1 and ch >= 1 and ch + 2 < 5: tw[ch + 2] = self.wb_dma(p, ch + 2, (ch + 2) % 3)
        V.put(FR, 32)
        self.cs_publish(p, (4, 5), [CS, CS + 4])
        p.barrier()
        for mu in range(2): self.correct(p, 4 + mu, ACC + 16 * mu)
        tk = self.swiglu(p, ACC, ACC + 16, 2)
        p.wait(tk); self.hflag(p, 2)
        V.put(ACC, 64); V.put(CS, 8); V.put(self.vHA); V.put(self.vBM, 4); V.put(self.vIR2); V.put(self.vC1)
        V.put(self.vXD, 2); V.put(self.vWDA); V.put(self.vWDB); V.put(self.vXA, 4); V.put(self.vWA, 8); V.put(self.vWB, 4); V.put(self.vSEL, 4)
        self.stamp(p, 'G1b')
        return p

    def stage2(self):
        p = Prog(); V = self.V; vL = self.vL
        VI = L_C1; WI = L_C2
        p.barrier()
        self.load_records(p, lambda p: p(f's_lshl_b32 {T0}, {sREC}, 14\ns_add_u32 {T0}, {T0}, {WS_V}'), VI, True, 'v')
        self.load_records(p, lambda p: p(f's_lshl_b32 {T0}, {sREC}, 14\ns_add_u32 {T0}, {T0}, {WS_WP}'), WI, True, 'w')
        self.stamp(p, 'II.in')
        ga = V.get(); t = V.get(); u = V.get()
        p(f'v_bfe_u32 v{t}, v{vL}, 2, 2\nv_xor_b32 v{t}, {sW}, v{t}\nv_lshlrev_b32 v{t}, 4, v{t}\nv_and_b32 v{u}, 15, v{vL}\nv_lshl_add_u32 v{t}, v{u}, 6, v{t}\nv_lshrrev_b32 v{u}, 4, v{vL}\nv_lshl_add_u32 v{ga}, v{u}, 12, v{t}')
        K = V.get(8, 4)
        for i, n in enumerate(('FRE', 'FIM', 'IRE', 'IIM')): self.tab_read(p, n, L_T23, self.n1, 240 + 4 * i, 'a')
        for i, n in enumerate(('TW2C', 'TW2S')): self.tab_read(p, n, L_T23, self.n1, K + 4 * i)
        FRE, FIM, IRE, IIM = (ar(240 + 4 * i, 4) for i in range(4)); TC, TS = K, K + 4
        p.barrier()
        self.flag(p, lambda p: p(f's_cmp_eq_u32 s2, 0\ns_cselect_b32 {T0}, {WS_GEN}, {hx(0xfffffff0)}'), wave0=True)
        q = V.get(16, 4); wq = q; X = V.get(12, 4); DR = V.get(12, 4); DI = V.get(12, 4); wr = V.get(); wi = V.get()
        for i in range(4): p(f'ds_read_b128 {vr(q+4*i,4)}, v{ga} offset:{VI + 1024*i}')
        for j in range(3):
            for i in range(4): p(f'v_mov_b32 v{X+4*j+i}, v{q+4*i+j}')
        for i in range(4): p(f'ds_read_b128 {vr(wq+4*i,4)}, v{ga} offset:{WI + 1024*i}')
        m16 = 'v_mfma_f32_16x16x32_bf16'
        def step(data_is_A, cr, ci):
            for j in range(3):
                for d, cst in ((DR, cr), (DI, ci)):
                    a, b = (vr(X + 4 * j, 4), cst) if data_is_A else (cst, vr(X + 4 * j, 4))
                    p(f'{m16} {vr(d+4*j,4)}, {a}, {b}, 0')
        def pack():
            for j in range(3):
                for i in range(4): p(f'v_cvt_pk_bf16_f32 v{X+4*j+i}, v{DR+4*j+i}, v{DI+4*j+i}')
        step(True, FRE, FIM)
        for j in range(3):
            for i in range(4): self.cmul(p, DR + 4 * j + i, DI + 4 * j + i, TC + i, TS + i, t, False)
        pack(); step(False, FRE, FIM)
        for j in range(3):
            for i in range(4):
                p(f'v_lshlrev_b32 v{wr}, 16, v{wq+4*i+j}\nv_and_b32 v{wi}, 0xffff0000, v{wq+4*i+j}')
                self.cmul(p, DR + 4 * j + i, DI + 4 * j + i, wr, wi, t, True)
        pack(); step(True, IRE, IIM)
        for j in range(3):
            for i in range(4): self.cmul(p, DR + 4 * j + i, DI + 4 * j + i, TC + i, TS + i, t, True)
        pack(); step(False, IRE, IIM)
        for j in range(3):
            for i in range(4): p(f'v_cvt_pk_bf16_f32 v{q+4*i+j}, v{DR+4*j+i}, v{DI+4*j+i}')
        p.barrier()
        for i in range(4): p(f'ds_write_b128 v{ga}, {vr(q+4*i,4)} offset:{VI + 1024*i}')
        p.barrier()
        V.put(q, 16); V.put(X, 12); V.put(DR, 12); V.put(DI, 12); V.put(wr); V.put(wi); V.put(K, 8); V.put(ga); V.put(t); V.put(u)
        self.store_records(p, VI, True, lambda p: p(f's_lshl_b32 {T0}, {sREC}, 6\ns_add_u32 {T0}, {T0}, {WS_VP}'))
        self.stamp(p, 'II.done')
        return p

    def stage3(self):
        p = Prog(); V = self.V; vL = self.vL
        VI = L_C1; PS = L_C3; YL = L_C2
        mf = 'v_mfma_f32_32x32x16_bf16'
        M = V.get(4, 4); self.phase_matrix(p, M, True)
        p.barrier()
        self.load_records(p, lambda p: p(f's_lshl_b32 {T0}, {sS2}, 14\ns_add_u32 {T0}, {T0}, {WS_VP}'), VI, False, 'vp')
        self.stamp(p, 'III.in')
        t = V.get(); u = V.get(); aG = V.get(3); aF = V.get(3); aM = V.get(3); al = V.get(2); be = V.get(2)
        p(f'v_lshrrev_b32 v{u}, 5, v{vL}\nv_lshlrev_b32 v{t}, 13, v{u}\nv_add_u32 v{t}, {VI}, v{t}')
        for it in range(3): p(f'v_add_u32 v{aG+it}, v{self.vRO+it}, v{t}')
        p(f'v_mul_u32_u24 v{u}, 3072, v{u}\nv_add_u32 v{u}, {PS}, v{u}')
        for it in range(3):
            kk = self.vKK + it
            p(f'v_lshl_add_u32 v{aF+it}, v{kk}, 2, v{u}\nv_sub_u32 v{t}, 640, v{kk}')
            if it != 1:
                p(f'v_cmp_eq_u32 vcc, {0 if it == 0 else 320}, v{kk}\nv_mov_b32 v{al+it//2}, 700\nv_cndmask_b32 v{t}, v{t}, v{al+it//2}, vcc')
                p(f'v_cndmask_b32_e64 v{al+it//2}, 1.0, 0.5, vcc\nv_cndmask_b32_e64 v{be+it//2}, 0, 0.5, vcc')
            p(f'v_lshl_add_u32 v{aM+it}, v{t}, 2, v{u}')
        G = V.get(24, 4)
        for i in range(3): self.tab_read(p, f'G20R_{i}', L_T23, self.n1, G + 4 * i); self.tab_read(p, f'G20I_{i}', L_T23, self.n1, G + 12 + 4 * i)
        p.barrier()
        A = V.get(16, 4); D3 = [V.get(16, 4) for _ in range(3)]
        for it in range(3):
            p(f'ds_read2st64_b32 {vr(A+4*it,2)}, v{aG+it} offset0:0 offset1:8\nds_read2st64_b32 {vr(A+4*it+2,2)}, v{aG+it} offset0:16 offset1:24')
        for it in range(3): p(f'{mf} {vr(D3[it],16)}, {vr(M,4)}, {vr(A+4*it,4)}, 0')
        for it in range(3):
            d = D3[it]
            if it != 1:
                for j in range(2):
                    for cc in range(2): p(f'v_mul_f32 v{d+4*j+cc}, v{d+4*j+cc}, v{al+it//2}\nv_fmac_f32 v{d+4*j+cc}, v{d+4*j+2+cc}, v{be+it//2}')
            for e in range(4): p(f'v_cvt_pk_bf16_f32 v{d+8+e}, v{d+2*e}, v{d+2*e+1}')
            for j in range(2): p(f'ds_write_b32 v{aM+it}, v{d+8+2*j+1} offset:{6144*j}\nds_write_b32 v{aF+it}, v{d+8+2*j} offset:{6144*j}')
        V.put(D3[2], 16); DR, DI = D3[0], D3[1]
        V.put(aG, 3); V.put(aF, 3); V.put(aM, 3); V.put(al, 2); V.put(be, 2); V.put(M, 4); V.put(self.vKK, 3); V.put(self.vRO, 3)
        b0 = V.get(3)
        p(f'v_add_u32 v{b0}, {PS}, v{self.vZA}\nv_add_u32 v{b0+1}, 1024, v{b0}\nv_and_b32 v{t}, 31, v{vL}\nv_lshlrev_b32 v{t}, 2, v{t}\ns_mul_i32 {T0}, {sW}, 3072\ns_add_u32 {T0}, {T0}, {PS + 2048}\nv_add_u32 v{b0+2}, {T0}, v{t}')
        V.put(self.vZA)
        p.barrier()
        for tt in range(3): p(f'ds_read2_b32 {vr(A+4*tt,2)}, v{b0+tt} offset0:0 offset1:32\nds_read2_b32 {vr(A+4*tt+2,2)}, v{b0+tt} offset0:64 offset1:96')
        for tt in range(3):
            for d, g in ((DR, G), (DI, G + 12)): p(f'{mf} {vr(d,16)}, {vr(A+4*tt,4)}, {vr(g+4*tt,4)}, {"0" if tt == 0 else vr(d,16)}')
        TW = self.vTW; F32 = self.vF32
        for r in range(16): self.cmul(p, DR + r, DI + r, TW + r, TW + 16 + r, t, True)
        for d in range(8): p(f'v_cvt_pk_bf16_f32 v{A+d}, v{DR+2*d}, v{DR+2*d+1}\nv_cvt_pk_bf16_f32 v{A+8+d}, v{DI+2*d}, v{DI+2*d+1}')
        C_, S_, N_ = F32, F32 + 8, F32 + 16
        seq = [(DR, A, C_), (DI, A, S_), (DR, A + 4, C_ + 4), (DI, A + 4, S_ + 4), (DR, A + 8, N_), (DI, A + 8, C_), (DR, A + 12, N_ + 4), (DI, A + 12, C_ + 4)]
        for n, (d, a, b) in enumerate(seq): p(f'{mf} {vr(d,16)}, {vr(a,4)}, {vr(b,4)}, {"0" if n < 2 else vr(d,16)}')
        ya = V.get()
        p(f'v_and_b32 v{t}, 31, v{vL}\nv_mul_u32_u24 v{t}, 40, v{t}\nv_lshrrev_b32 v{u}, 5, v{vL}\nv_lshl_add_u32 v{t}, v{u}, 3, v{t}\ns_mul_i32 {T0}, {sW}, 2560\nv_add_u32 v{ya}, {T0}, v{t}')
        for comp, d in enumerate((DR, DI)):
            for e in range(6): p(f'v_cvt_pk_bf16_f32 v{A+6*comp+e}, v{d+2*e}, v{d+2*e+1}')
        for comp in range(2):
            for j in range(2): p(f'ds_write_b64 v{ya}, {vr(A+6*comp+2*j,2)} offset:{YL + comp*1280 + 16*j}')
        p('s_mov_b64 exec, 0xffffffff')
        for comp in range(2): p(f'ds_write_b64 v{ya}, {vr(A+6*comp+4,2)} offset:{YL + comp*1280 + 32}')
        p('s_mov_b64 exec, -1')
        for i in range(5): p(f'ds_read_b64 {vr(A+2*i,2)}, v{self.vNAT} offset:{YL + 256*i}')
        XR = self.vXR; tk = []
        p(f's_add_u32 {T0}, {sXROW}, {WS_Y}')
        for i in range(10):
            p(f'v_lshlrev_b32 v{t}, 16, v{A+i}\nv_lshlrev_b32 v{u}, 16, v{XR+i}\nv_add_f32 v{t}, v{t}, v{u}')
            p(f'v_and_b32 v{A+i}, 0xffff0000, v{A+i}\nv_and_b32 v{u}, 0xffff0000, v{XR+i}\nv_add_f32 v{u}, v{A+i}, v{u}\nv_cvt_pk_bf16_f32 v{A+i}, v{t}, v{u}')
            if i & 1: tk.append(p.t(f'buffer_store_dwordx2 {vr(A+i-1,2)}, v{self.vROW}, {sWS}, {T0} offen offset:{128*(i-1)} sc1'))
        p.wait(tk)
        self.flag(p, lambda p: p(f's_lshl_b32 {T0}, {sS2}, 4\ns_lshl_b32 {T1}, {sW}, 2\ns_add_u32 {T0}, {T0}, {T1}\ns_add_u32 {T0}, {T0}, {WS_YF}'))
        V.put(A, 16); V.put(DR, 16); V.put(DI, 16); V.put(G, 24); V.put(b0, 3); V.put(ya); V.put(t); V.put(u)
        V.put(XR, 10); V.put(self.vROW); V.put(self.vNAT); V.put(TW, 32); V.put(F32, 24)
        self.stamp(p, 'III.done')
        return p

    def g2(self):
        p = Prog(); V = self.V; vL = self.vL
        m16 = 'v_mfma_f32_16x16x32_bf16'
        t = V.get(4, 4); u = V.get()
        def ldw(p): p(f's_mov_b32 {T0}, {WS_W2F}\nbuffer_load_dwordx4 {vr(t,4)}, v{self.vL16}, {sWS}, {T0} offen sc1')
        def ckw(p):
            for i in range(4): p(f'v_xor_b32 v{t+i}, {sN}, v{t+i}')
            p(f'v_or_b32 v{t}, v{t}, v{t+1}\nv_or3_b32 v{t}, v{t}, v{t+2}, v{t+3}\nv_cmp_ne_u32 vcc, 0, v{t}')
        self.poll(p, ldw, ckw, 'w2f')
        kap = lambda s: 3 * (s % 4) + ((s // 4) + (s & 1)) % 3
        areg = lambda s: (160 + 20 * s) if s < 4 else 20 * (s - 4)
        p(f's_mul_i32 s71, {sW}, 480\ns_mul_i32 {T0}, {sC2}, 5\ns_add_u32 s71, s71, {T0}\ns_lshl_b32 s71, s71, 10\ns_add_u32 s71, s71, {WS_W2P}')
        for s in range(12):
            p(f's_add_u32 {T0}, s71, {kap(s)*40*1024}')
            for tt in range(5):
                if tt == 4: p(f's_add_u32 {T0}, {T0}, 4096')
                p(f'buffer_load_dwordx4 {ar(areg(s)+4*tt,4)}, v{self.vL16}, {sWS}, {T0} offen offset:{1024*(tt&3)} sc1')
        p(f'v_min_u32 v{u}, 23, v{vL}\nv_lshlrev_b32 v{u}, 2, v{u}')
        def ldh(p): p(f's_lshl_b32 {T0}, {sR2}, 2\ns_add_u32 {T0}, {T0}, {sW}\ns_lshl_b32 {T0}, {T0}, 7\ns_add_u32 {T0}, {T0}, {WS_HF}\nbuffer_load_dword v{t}, v{u}, {sWS}, {T0} offen sc1')
        self.poll(p, ldh, lambda p: p(f'v_cmp_ne_u32 vcc, {sN}, v{t}'), 'hf')
        self.stamp(p, 'G2.in')
        ACC = V.get(80, 4); HF = V.get(64, 4)
        p(f's_mul_i32 s90, {sR2}, {4*48}\ns_mul_i32 {T0}, {sW}, 12\ns_add_u32 s90, s90, {T0}\ns_lshl_b32 s90, s90, 10\ns_add_u32 s90, s90, {WS_H}')
        def ldf(s):
            for rg in range(4):
                p(f's_add_u32 {T0}, s90, {(rg*48 + kap(s))*1024}\nbuffer_load_dwordx4 {vr(HF+16*(s%4)+4*rg,4)}, v{self.vL16}, {sWS}, {T0} offen sc1')
        for s in range(3): ldf(s)
        for s in range(12):
            if s + 3 < 12: ldf(s + 3)
            for rg in range(4):
                for tt in range(5):
                    d = ACC + 4 * (5 * rg + tt)
                    p(f'{m16} {vr(d,4)}, {ar(areg(s)+4*tt,4)}, {vr(HF+16*(s%4)+4*rg,4)}, {"0" if s == 0 else vr(d,4)}')
        self.stamp(p, 'G2.mm')
        p(f'v_lshlrev_b32 v{u}, 2, v{vL}')
        def ldy(p): p(f's_lshr_b32 {T0}, {sR2}, 1\ns_lshl_b32 {T0}, {T0}, 8\ns_add_u32 {T0}, {T0}, {WS_YF}\nbuffer_load_dword v{t}, v{u}, {sWS}, {T0} offen sc1')
        self.poll(p, ldy, lambda p: p(f'v_cmp_ne_u32 vcc, {sN}, v{t}'), 'yf')
        ra = V.get(3); ga = V.get(3); wa = V.get(); Y = V.get(12, 4)
        for i in range(3):
            p(f'v_add_u32 v{t}, {64*i}, v{vL}\nv_min_u32 v{t+1}, 159, v{t}\nv_mul_u32_u24 v{t+2}, 6554, v{t+1}\nv_lshrrev_b32 v{t+2}, 16, v{t+2}\nv_mul_u32_u24 v{t+3}, 10, v{t+2}\nv_sub_u32 v{t+3}, v{t+1}, v{t+3}')
            p(f'v_mul_u32_u24 v{ra+i}, 336, v{t+2}\nv_lshl_add_u32 v{ra+i}, v{t+3}, 5, v{ra+i}\ns_mul_i32 {T0}, {sW}, {16*336}\ns_add_u32 {T0}, {T0}, {L_XS}\nv_add_u32 v{ra+i}, {T0}, v{ra+i}')
            p(f'v_mul_u32_u24 v{ga+i}, 1280, v{t+2}\nv_lshl_add_u32 v{ga+i}, v{t+3}, 4, v{ga+i}')
            if i == 2: p(f'v_cmp_gt_u32 vcc, 160, v{t}\nv_mov_b32 v{t+1}, 0x7ffffff0\nv_cndmask_b32 v{ga+i}, v{t+1}, v{ga+i}, vcc')
        p(f's_and_b32 {T0}, {sR2}, 1\ns_lshl_b32 {T0}, {T0}, 2\ns_add_u32 {T0}, {T0}, {sW}\ns_lshl_b32 {T0}, {T0}, 8\ns_lshr_b32 {T1}, {sR2}, 1\ns_lshl_b32 {T1}, {T1}, 4\ns_add_u32 {T0}, {T0}, {T1}')
        p(f's_mul_i32 s91, {T0}, 1280\ns_mul_i32 {T0}, {sC2}, 160\ns_add_u32 s91, s91, {T0}\ns_add_u32 {T0}, s91, {WS_Y}')
        for i in range(3): p(f'buffer_load_dwordx4 {vr(Y+4*i,4)}, v{ga+i}, {sWS}, {T0} offen sc1')
        p(f'v_and_b32 v{t}, 15, v{vL}\nv_mul_u32_u24 v{t}, 336, v{t}\nv_lshrrev_b32 v{u}, 4, v{vL}\nv_lshl_add_u32 v{t}, v{u}, 4, v{t}\ns_mul_i32 {T0}, {sW}, 21504\ns_add_u32 {T0}, {T0}, {L_XS}\nv_add_u32 v{wa}, {T0}, v{t}')
        p.barrier()
        for rg in range(4):
            for tt in range(5): p(f'ds_write_b128 v{wa}, {vr(ACC+4*(5*rg+tt),4)} offset:{rg*16*336 + tt*64}')
        p.barrier()
        R = HF
        for i in range(3):
            for src in range(4):
                o = src * 21504
                if o + 16 > 65535: raise RuntimeError
                p(f'ds_read_b128 {vr(R+8*src,4)}, v{ra+i} offset:{o}\nds_read_b128 {vr(R+8*src+4,4)}, v{ra+i} offset:{o+16}')
            for e in range(0, 8, 2):
                p(f'v_pk_add_f32 {vr(R+e,2)}, {vr(R+e,2)}, {vr(R+8+e,2)}\nv_pk_add_f32 {vr(R+16+e,2)}, {vr(R+16+e,2)}, {vr(R+24+e,2)}\nv_pk_add_f32 {vr(R+e,2)}, {vr(R+e,2)}, {vr(R+16+e,2)}')
                y = Y + 4 * i + e // 2
                p(f'v_lshlrev_b32 v{t}, 16, v{y}\nv_and_b32 v{t+1}, 0xffff0000, v{y}\nv_pk_add_f32 {vr(R+e,2)}, {vr(R+e,2)}, {vr(t,2)}\nv_cvt_pk_bf16_f32 v{y}, v{R+e}, v{R+e+1}')
            p(f'buffer_store_dwordx4 {vr(Y+4*i,4)}, v{ga+i}, {sOUT}, s91 offen')
        self.stamp(p, 'end')
        return p

    def build(self):
        P = Prog()
        P.ext(self.prologue())
        self.stamp(P, 'start')
        P.ext(self.stage1())
        P.ext(self.packs())
        P.ext(self.g1_setup())
        P.ext(self.g1a())
        P.ext(self.stage2())
        P.ext(self.g1b())
        P.ext(self.stage3())
        P.ext(self.g2())
        if self.opts.get('probe'):
            if self.opts['probe'] == 'none': P('s_mov_b32 s96, s94')
            P('s_waitcnt vmcnt(0)\ns_sub_u32 s96, s96, s94\ns_lshl_b32 s96, s96, 1\ns_add_u32 s96, s96, 5000')
            P('L_spin:\ns_memrealtime s[98:99]\ns_waitcnt lgkmcnt(0)\ns_sub_u32 s98, s98, s94\ns_cmp_lt_u32 s98, s96\ns_cbranch_scc1 L_spin')
        P('s_waitcnt vmcnt(0)\nL_end:\ns_endpgm')
        rep = {}
        body = finalize(P.L, rep)
        hdr = open('parallel_sum__spectral_gfnet__glu_gated_swiglu__prompt.s.ref').read().split('\n')
        out = [l for l in hdr if l.startswith(';') and '@launch' not in l and 'Override launch' not in l and 'grid=ceil' not in l]
        out.append(f'; @launch grid=(256,1,1) block=(256,1,1) lds={LDS_BYTES}')
        out += ['.amdgcn_target "amdgcn-amd-amdhsa--gfx950"', '.text', f'.globl {KNAME}', '.p2align 8', f'.type {KNAME},@function', f'{KNAME}:']
        out += [('' if l.endswith(':') else '    ') + l for l in body]
        out += ['.p2align 8', '.type tab_data,@object', 'tab_data:']
        T = self.TAB
        for i in range(0, len(T), 8): out.append('.long ' + ','.join(hex(int(v)) for v in T[i:i + 8]))
        out += [f'.size tab_data, {len(T)*4}', '.section .rodata,"a"', '.p2align 6', f'.amdhsa_kernel {KNAME}',
                '  .amdhsa_next_free_vgpr 512', '  .amdhsa_next_free_sgpr 102', '  .amdhsa_accum_offset 256', '  .amdhsa_group_segment_fixed_size 0',
                '  .amdhsa_kernarg_size 80', '  .amdhsa_user_sgpr_count 2', '  .amdhsa_user_sgpr_kernarg_segment_ptr 1', '  .amdhsa_system_sgpr_workgroup_id_x 1',
                '.end_amdhsa_kernel']
        rep['vhi'] = self.V.hi
        return '\n'.join(out) + '\n', rep

if __name__ == '__main__':
    stamps = '--stamps' in sys.argv
    opts = dict(a[2:].split('=') for a in sys.argv[2:] if a.startswith('--') and '=' in a)
    g = Gen(stamps=stamps, opts=opts)
    s, rep = g.build()
    path = sys.argv[1]
    open(path, 'w').write(s)
    if stamps: open(path + '.names', 'w').write('\n'.join(g.stamp_names))
    print(rep, len(s))
```
